```python
import torch

def _softmax(x, axis=-1):
    return torch.softmax(x, dim=axis)

def _gelu(x):
    return torch.nn.functional.gelu(x, approximate='tanh')

def _silu(x):
    return torch.nn.functional.silu(x)

def _sigmoid(x):
    return torch.sigmoid(x)

def _layernorm(x, axis=-1, eps=1e-05):
    m = x.mean(dim=axis, keepdim=True)
    v = x.var(dim=axis, keepdim=True, unbiased=False)
    return (x - m) / torch.sqrt(v + eps)

def _scatter_add(tgt, idx, src, axis=0):
    return tgt.clone().index_add_(axis, idx, src)

def _segment_sum(src, seg, n):
    out = torch.zeros((n,) + src.shape[1:], dtype=src.dtype)
    return out.index_add_(0, seg, src)

def _pad(x, pw):
    flat = tuple((v for pair in reversed(pw) for v in pair))
    return torch.nn.functional.pad(x, flat)
kernel_name = 'standalone__kv_cache_quant_pre_rope_vs_post_rope__decode'

def setup_inputs():

    _w = lambda a: (lambda t: t.to(torch.bfloat16) if t.is_floating_point() else t)(torch.as_tensor(a))
    B, Sq, Skv = (1, 1, 16384)
    H, Dh0 = (32, 192)
    G = -1 if -1 > 0 else Dh0
    G = max(2, G // 2 * 2)
    Dh = max(G, Dh0 // G * G)
    Skv = max(Skv, Sq)
    ng = Dh // G
    bits = 3 if 3 > 1 else 4
    bits = max(2, min(8, bits))
    qmax = (1 << bits) - 1
    half = Dh // 2
    inv = 1.0 / 10000.0 ** (torch.arange(half) / max(1, half))
    ang_k = torch.arange(Skv)[:, None] * inv[None, :]
    ang_q = torch.arange(Skv - Sq, Skv)[:, None] * inv[None, :]
    kc = torch.cat([torch.cos(ang_k), torch.cos(ang_k)], dim=-1)
    ks = torch.cat([torch.sin(ang_k), torch.sin(ang_k)], dim=-1)
    qc = torch.cat([torch.cos(ang_q), torch.cos(ang_q)], dim=-1)
    qs = torch.cat([torch.sin(ang_q), torch.sin(ang_q)], dim=-1)
    qk_i = torch.randint(0, qmax + 1, (B, H, Skv, Dh)).to(torch.int32)
    qv_i = torch.randint(0, qmax + 1, (B, H, Skv, Dh)).to(torch.int32)
    ksc = torch.abs((lambda *s: torch.randn(*s, dtype=torch.bfloat16) * 0.4)(B, H, Skv, ng)) * 0.1 + 0.01
    kzp = torch.full((B, H, Skv, ng), qmax / 2.0)
    vsc = torch.abs((lambda *s: torch.randn(*s, dtype=torch.bfloat16) * 0.4)(B, H, Skv, ng)) * 0.1 + 0.01
    vzp = torch.full((B, H, Skv, ng), qmax / 2.0)
    return {'q': _w((lambda *s: torch.randn(*s, dtype=torch.bfloat16) * 6.4)(B, H, Sq, Dh) * 0.5), 'qk': _w(qk_i), 'k_scales': _w(ksc), 'k_zeros': _w(kzp), 'qv': _w(qv_i), 'v_scales': _w(vsc), 'v_zeros': _w(vzp), 'q_cos': _w(qc), 'q_sin': _w(qs), 'k_cos': _w(kc), 'k_sin': _w(ks)}

def reference(q, qk, k_scales, k_zeros, qv, v_scales, v_zeros, q_cos, q_sin, k_cos, k_sin):
    B, H, Sq, Dh = q.shape
    ng = k_scales.shape[-1]
    G = Dh // ng
    half = Dh // 2
    ks = (lambda x, n, axis: torch.repeat_interleave(x, n, dim=axis))(k_scales, G, axis=-1)
    kz = (lambda x, n, axis: torch.repeat_interleave(x, n, dim=axis))(k_zeros, G, axis=-1)
    k = ((lambda x, dt: x.to(dt))(qk, q.dtype) - kz) * ks
    vs = (lambda x, n, axis: torch.repeat_interleave(x, n, dim=axis))(v_scales, G, axis=-1)
    vz = (lambda x, n, axis: torch.repeat_interleave(x, n, dim=axis))(v_zeros, G, axis=-1)
    v = ((lambda x, dt: x.to(dt))(qv, q.dtype) - vz) * vs
    k1 = k[..., :half].clone()
    k2 = k[..., half:].clone()
    krh = torch.concatenate([-k2, k1], axis=-1)
    kr = k * k_cos[None, None, :, :] + krh * k_sin[None, None, :, :]
    q1 = q[..., :half].clone()
    q2 = q[..., half:].clone()
    qrh = torch.concatenate([-q2, q1], axis=-1)
    qr = q * q_cos[None, None, :, :] + qrh * q_sin[None, None, :, :]
    logits = torch.einsum('bhqd,bhkd->bhqk', qr, kr) * float(Dh) ** (-0.5)
    attn = _softmax(logits, axis=-1)
    out = torch.einsum('bhqk,bhkd->bhqd', attn, v)
    return out
```

```python
import re

TRANS = ("v_exp_f32", "v_log_f32", "v_rcp_f32", "v_rsq_f32", "v_sqrt_f32", "v_sin_f32", "v_cos_f32")

def _regs(tok):
    tok = tok.strip()
    tok = tok.lstrip('-')
    m = re.fullmatch(r"(?:abs\()?([vsa])\[(\d+):(\d+)\]\)?", tok)
    if m:
        return [f"{m.group(1)}{i}" for i in range(int(m.group(2)), int(m.group(3)) + 1)]
    m = re.fullmatch(r"(?:abs\()?([vsa])(\d+)\)?", tok)
    if m:
        return [f"{m.group(1)}{m.group(2)}"]
    if tok in ("vcc", "vcc_lo", "vcc_hi"):
        return ["vcc"]
    if tok in ("exec", "exec_lo", "exec_hi"):
        return ["exec"]
    if tok == "m0":
        return ["m0"]
    return []

def _split_ops(s):
    out, depth, cur = [], 0, ""
    for ch in s:
        if ch in "[(":
            depth += 1
        if ch in "])":
            depth -= 1
        if ch == "," and depth == 0:
            out.append(cur.strip()); cur = ""
        else:
            cur += ch
    if cur.strip():
        out.append(cur.strip())
    return out

class Ins:
    def __init__(self, text):
        self.text = text
        t = text.split(";")[0].strip()
        parts = t.split(None, 1)
        self.op = parts[0]
        rest = parts[1] if len(parts) > 1 else ""
        ops = _split_ops(rest)
        self.mods = ""
        if ops:
            last = ops[-1].split(None, 1)
            if len(last) > 1 and not last[0].endswith(("[", ":")):
                ops[-1] = last[0]; self.mods = last[1]
        self.ops = ops
        op = self.op
        self.valu = op.startswith("v_")
        self.salu = op.startswith("s_") and not op.startswith(("s_load", "s_buffer_load", "s_memtime", "s_memrealtime", "s_atomic"))
        self.vmem = op.startswith(("buffer_", "global_", "flat_"))
        self.ds = op.startswith("ds_")
        self.dpp = "_dpp" in op
        self.trans = any(op.startswith(x) for x in TRANS)
        self.dot = op.startswith("v_dot")
        self.permlane = op.startswith("v_permlane")
        self.readlane = op.startswith(("v_readlane", "v_readfirstlane"))
        self.w, self.r = [], []
        if self.valu:
            if op.startswith("v_cmp"):
                self.w = _regs(ops[0]); srcs = ops[1:]
                if op.startswith("v_cmpx"): self.w += ["exec"]
            elif op.startswith(("v_add_co", "v_sub_co", "v_addc_co", "v_subb_co", "v_subrev_co")):
                self.w = _regs(ops[0]) + _regs(ops[1]); srcs = ops[2:]
            elif self.permlane and "swap" in op:
                self.w = _regs(ops[0]) + _regs(ops[1]); srcs = ops[:]
            else:
                self.w = _regs(ops[0]); srcs = ops[1:]
                if op.startswith(("v_fmac", "v_dot2c", "v_pk_fmac", "v_writelane")) or self.dpp:
                    srcs = srcs + [ops[0]]
            for s in srcs:
                self.r += _regs(s)
            if op.startswith("v_cndmask") and len(ops) == 3:
                self.r += ["vcc"]
        elif self.vmem:
            if "load" in op and "lds" not in self.mods:
                self.w = _regs(ops[0])
                for s in ops[1:]: self.r += _regs(s)
                self.data = []
            else:
                for s in ops: self.r += _regs(s)
                if op.startswith("buffer_"):
                    self.data = _regs(ops[0])
                else:
                    self.data = _regs(ops[1]) if len(ops) > 1 else []
                if "atomic" in op and "sc0" in self.mods and op.startswith("buffer_"):
                    self.w = _regs(ops[0])
        elif self.ds:
            if op.startswith(("ds_read", "ds_bpermute", "ds_permute", "ds_swizzle")):
                self.w = _regs(ops[0])
                for s in ops[1:]: self.r += _regs(s)
            else:
                for s in ops: self.r += _regs(s)
        elif self.salu:
            if op.startswith(("s_cmp", "s_cbranch", "s_branch", "s_waitcnt", "s_nop", "s_barrier", "s_endpgm", "s_setprio", "s_sleep", "s_bitcmp")):
                for s in ops: self.r += _regs(s)
            else:
                self.w = _regs(ops[0]) if ops else []
                for s in ops[1:]: self.r += _regs(s)
                if "saveexec" in op: self.w += ["exec"]
        self.wide_store = self.vmem and ("store_dwordx3" in op or "store_dwordx4" in op)
        self.states = 1
        if op == "s_nop":
            self.states = int(ops[0], 0) + 1

def need(prod, cons):
    n = 0
    pw = set(prod.w)
    if prod.valu:
        vw = {x for x in pw if x[0] in "va" and x != "vcc"}
        sw = {x for x in pw if x[0] == "s" or x == "vcc"}
        cr = set(cons.r); cw = set(cons.w)
        if cons.valu:
            if cons.dpp and vw & cr: n = max(n, 2)
            if cons.permlane and vw & cr: n = max(n, 2)
            if cons.readlane and vw & cr: n = max(n, 1)
            if prod.trans and not cons.trans and vw & cr: n = max(n, 1)
            if prod.trans and cons.trans and vw & cr: n = max(n, 1)
            if prod.dot:
                if cons.op != prod.op and vw & (cr | cw): n = max(n, 3)
                if cons.op == prod.op:
                    ab = set(_regs(cons.ops[1]) + _regs(cons.ops[2]))
                    if vw & ab: n = max(n, 3)
                    elif vw & cw and not (len(cons.ops) > 3 and vw & set(_regs(cons.ops[3]))): n = max(n, 3)
            if sw & cr:
                n = max(n, 4 if cons.op.startswith(("v_readlane", "v_writelane")) else 2)
            if "exec" in pw and (cons.dpp): n = max(n, 5)
            if "exec" in pw and (cons.readlane or cons.permlane): n = max(n, 4)
        if cons.vmem or cons.ds:
            if sw & cr and cons.vmem: n = max(n, 5)
            if prod.dot and vw & (cr | cw): n = max(n, 3)
            if prod.trans and vw & cr: n = max(n, 1)
        if cons.salu and sw & cr:
            n = max(n, 1)
    if prod.wide_store:
        d = set(prod.data)
        if d & set(cons.w): n = max(n, 2)
    if prod.salu and "m0" in pw and (cons.vmem and "lds" in cons.mods):
        n = max(n, 1)
    return n

class Asm:
    def __init__(self):
        self.lines = []
        self.hist = []
        self.nops = 0
    def raw(self, s):
        self.lines.append(s)
    def label(self, name, flush=True):
        if flush: self.fence()
        self.lines.append(f"{name}:")
    def fence(self):
        dist = 0; req = 0
        for p in reversed(self.hist[-8:]):
            if p.valu or p.wide_store:
                k = 5 if any(x[0] == "s" or x in ("vcc", "exec") for x in p.w) else (3 if p.dot else 2)
                req = max(req, k - dist)
            dist += p.states
        if req > 0:
            self._emit(Ins(f"s_nop {req-1}"))
        self.hist = []
    def _emit(self, ins):
        self.lines.append("    " + ins.text)
        self.hist.append(ins)
        if len(self.hist) > 12: self.hist = self.hist[-12:]
        if ins.op == "s_nop": self.nops += 1
    def __call__(self, text):
        for t in text.split("\n"):
            t = t.strip()
            if not t or t.startswith(";"):
                if t: self.lines.append("    " + t)
                continue
            ins = Ins(t)
            dist = 0; req = 0
            for p in reversed(self.hist):
                req = max(req, need(p, ins) - dist)
                dist += p.states
                if dist >= 6: break
            if req > 0:
                self._emit(Ins(f"s_nop {req-1}"))
            if ins.op.startswith(("s_cbranch", "s_branch")):
                self.fence()
            self._emit(ins)
    def text(self):
        return "\n".join(self.lines) + "\n"
```

```python
import sys, math, struct
from asmb import Asm

KN = "standalone__kv_cache_quant_pre_rope_vs_post_rope__decode_kernel"
HS = 16384 * 768
KVB = 32 * HS
CSB = 16384 * 384
SCB = 32 * 16384 * 2
WSB = 1610612736
CT_OFF = 32 << 20
STAMP_OFF = 1 << 30

def f2u(f): return struct.unpack("<I", struct.pack("<f", f))[0]
HEADER = open("standalone__kv_cache_quant_pre_rope_vs_post_rope__decode.s.ref").read().split("; Override launch")[0]

def gen(stamp=0, Dc=22, Dmin=17, Dmax=26, Dph0=22, G=200, CP=16, DLY=3, NS=16, STR=4352, P0=850, LA=2, FLT=27, hsleep=4, csleep=1,
        psleep=1, stf="sc0 sc1", ldf="sc0 sc1", codepf=3, ctl=1, EPAT=72, lprio=3, C0=8, spr=1, SLA=3, SE=0, CSB4=1, CSQ=1, safe=0, stampk=0, dbg=""):
    NPART = 128
    NLD = NPART // 8
    TOT = 128 * 24
    L_T = 49152
    L_QO = L_T + 16384
    L_FL = L_QO + 12288
    lds = L_FL + 512
    F_D, F_RDY, F_Q, F_T, F_P, F_Z, F_M, F_K, F_V, F_ML = 4, 5, 32, 12, 13, 14, 15, 16, 24, 64
    a = Asm()
    a.raw(HEADER.rstrip("\n"))
    a.raw(f"; @launch grid=(256,1,1) block=(384,1,1) lds={lds}")
    a.raw('.amdgcn_target "amdgcn-amd-amdhsa--gfx950"')
    for l in """Overview (256 workgroups = loader wave + 4 consumer waves + helper wave each; HBM-bandwidth bound):
 * A workgroup owns 128 rows x 16 heads; an item is 16 rows x 2 heads (24 KiB), a unit 4 rows x 1 head (3 KiB, one consumer wave).
 * The loader wave streams all K items, then all V items, by LDS-DMA into a 48 KiB ring; ready / done counters live in LDS.
 * K pass: logit = ks * sum_d (k[d]-kz) * (qr[d]*cos[d] +- qr[d+-96]*sin[d+-96]) (RoPE moved onto q, v_dot2 on (cos,sin) pairs,
   which stay in VGPRs).  The helper turns the logits into p*vs with the workgroup's true max per head; V pass: acc += p*vs*v.
 * Load balance: 16 workgroups publish when they pass a checkpoint; every helper compares its own progress with their mean and
   sets how many loads its loader keeps in flight (bandwidth share), so all workgroups finish together.  Speed only.
 * Hand-offs through d_ws carry a per-launch epoch (agreed through d_debug[0]) so that stale data is never accepted;
   s_sleep appears only inside polling loops.
 * Helper of workgroup i finally combines 24 output columns (i&7) of head (i>>3) from the 128 partials (m, l, acc).""".split("\n"):
        a.raw("; " + l)
    a.raw(".text"); a.raw(f".globl {KN}"); a.raw(".p2align 8"); a.raw(f".type {KN},@function"); a.raw(f"{KN}:")
    srd = lambda b: f"s[{b}:{b+3}]"
    sp = lambda i: f"s[{i}:{i+1}]"
    v = lambda i: f"v{i}"
    vp = lambda i: f"v[{i}:{i+1}]"
    v4 = lambda i: f"v[{i}:{i+3}]"
    s = lambda i: f"s{i}"
    DPPALL = "row_mask:0xf bank_mask:0xf"
    sGrp = 3
    sK, sC, sS, sWS, sDB, sOUT, sQ, sQC, sQS = 4, 12, 16, 20, 24, 28, 32, 36, 40
    sSt = 44
    sWave, sRow0 = 76, 77
    sT0, sT1, sT2, sT3 = 92, 93, 94, 95
    vLane = 1
    vX, vY, vZ = 18, 19, 23
    NV = 168
    def mk(b, p, n):
        a(f"s_mov_b32 {s(b)}, {s(p)}"); a(f"s_mov_b32 {s(b+1)}, {s(p+1)}"); a(f"s_mov_b32 {s(b+2)}, {n}"); a(f"s_mov_b32 {s(b+3)}, 0x20000")

    CS = [96, 98, 4, 6, 8, 10, 24]
    def cst(i):
        if stamp == 4: a(f"s_memrealtime {sp(CS[i])}")
    a("s_load_dwordx16 s[48:63], s[0:1], 0")
    a("s_load_dwordx8 s[64:71], s[0:1], 64")
    a("s_load_dwordx4 s[72:75], s[0:1], 96")
    if stamp: a(f"s_memrealtime {sp(sSt)}")
    a("s_cmp_ge_u32 s2, 256")
    a("s_cbranch_scc1 L_end")
    a(f"v_lshrrev_b32 {v(vX)}, 6, v0")
    a(f"v_and_b32 {v(vLane)}, 63, v0")
    a(f"v_readfirstlane_b32 {s(sWave)}, {v(vX)}")
    vFL = 7
    a(f"v_cmp_eq_u32 vcc, {F_D}, {v(vLane)}")
    a(f"v_lshlrev_b32 {v(vFL)}, 2, {v(vLane)}")
    a(f"v_add_u32 {v(vFL)}, {L_FL}, {v(vFL)}")
    a(f"v_cndmask_b32 {v(vY)}, 0, {Dph0}, vcc")
    a(f"ds_write_b32 {v(vFL)}, {v(vY)}")
    a(f"s_and_b32 {s(sT0)}, s2, 7"); a(f"s_lshl_b32 {s(sRow0)}, {s(sT0)}, 6")
    a(f"s_and_b32 {s(sT0)}, s2, 0x60"); a(f"s_lshl4_add_u32 {s(sRow0)}, {s(sT0)}, {s(sRow0)}")
    a(f"s_and_b32 {s(sT0)}, s2, 0x10"); a(f"s_lshl1_add_u32 {s(sRow0)}, {s(sT0)}, {s(sRow0)}")
    a(f"s_lshr_b32 {s(sT0)}, s2, 7"); a(f"s_lshl4_add_u32 {s(sRow0)}, {s(sT0)}, {s(sRow0)}")
    a(f"s_bfe_u32 {s(sGrp)}, s2, 0x10003")
    a(f"s_lshl_b32 {s(sT0)}, {s(sGrp)}, 13"); a(f"s_add_u32 {s(sRow0)}, {s(sRow0)}, {s(sT0)}")
    a(f"s_cmp_lg_u32 {s(sWave)}, 0")
    a("s_cbranch_scc1 L_other")

    sOff, sHB, sRow, sIt, sNeed, sD, sF, sStep, sJmp, sHB0 = 78, 79, 80, 81, 82, 83, 84, 85, 86, 87
    vL16, vF, vFa, vR, vRa = 2, 3, vFL, 5, 6
    if lprio: a(f"s_setprio {lprio}")
    a(f"v_lshlrev_b32 {v(vL16)}, 4, {v(vLane)}")
    a(f"s_mul_i32 {s(sHB)}, {s(sGrp)}, {2*HS}")
    a(f"s_mul_i32 {s(sOff)}, {s(sRow0)}, 768")
    a(f"s_add_u32 {s(sOff)}, {s(sOff)}, {s(sHB)}")
    a(f"s_mov_b32 {s(sK+2)}, {KVB}"); a(f"s_mov_b32 {s(sK+3)}, 0x20000")
    a("s_mov_b32 m0, 0")
    a(f"s_movk_i32 {s(sStep)}, 4096")
    a(f"s_mov_b32 {s(sJmp)}, {HS-8192}")
    a("s_waitcnt lgkmcnt(0)")
    a(f"s_mov_b32 {s(sK)}, s50"); a(f"s_mov_b32 {s(sK+1)}, s51")
    a.label("L_i0")
    for i in range(4):
        a(f"buffer_load_dwordx4 {v(vL16)}, {srd(sK)}, {s(sOff)} offen offset:{1024*i} nt lds")
    a(f"s_add_u32 m0, m0, {s(sStep)}")
    a("s_cmpk_eq_u32 m0, 12288")
    a(f"s_cselect_b32 {s(sT0)}, {s(sJmp)}, {s(sStep)}")
    a(f"s_add_u32 {s(sOff)}, {s(sOff)}, {s(sT0)}")
    a("s_cmpk_lt_u32 m0, 24576")
    a("s_cbranch_scc1 L_i0")
    a(f"s_movk_i32 {s(sStep)}, 3072")
    a(f"s_mov_b32 {s(sJmp)}, {HS-12288}")
    a(f"s_mov_b32 {s(sHB0)}, {s(sHB)}")
    a(f"s_mov_b32 {s(sRow)}, {s(sRow0)}")
    a(f"s_mov_b32 {s(sIt)}, 0")
    a(f"s_mov_b32 {s(sNeed)}, -1")
    a(f"v_mov_b32 {v(vRa)}, {L_FL + 4*F_RDY}")
    if stamp == 2:
        for r in range(8, 13): a(f"v_mov_b32 v{r}, 0")
        a(f"s_mov_b32 {s(sSt+2)}, {s(sSt)}")
        a(f"s_mov_b32 {s(sD)}, 24")
    a("s_barrier")
    a(f"ds_read_b32 {v(vF)}, {v(vFa)}")
    a("; next item"); a.label("L_next")
    if stamp == 2:
        a("s_waitcnt lgkmcnt(0)")
        a(f"s_and_b32 m0, {s(sIt)}, 63")
        a(f"s_cmp_lt_u32 {s(sIt)}, 64")
        a("s_cbranch_scc0 L_shi")
        a(f"v_writelane_b32 v8, {s(sSt+2)}, m0"); a(f"v_writelane_b32 v10, {s(sD)}, m0")
        a("s_branch L_shd")
        a.label("L_shi")
        a(f"v_writelane_b32 v9, {s(sSt+2)}, m0"); a(f"v_writelane_b32 v11, {s(sD)}, m0")
        a.label("L_shd")
        a(f"s_memrealtime {sp(sSt+2)}")
    a(f"s_add_u32 {s(sIt)}, {s(sIt)}, 1")
    a(f"s_add_u32 {s(sRow)}, {s(sRow)}, 2048")
    a(f"s_and_b32 {s(sRow)}, {s(sRow)}, 16383")
    a(f"s_and_b32 {s(sT0)}, {s(sIt)}, 7")
    a(f"s_cselect_b32 {s(sT0)}, 0, {4*HS}")
    a(f"s_add_u32 {s(sHB)}, {s(sHB)}, {s(sT0)}")
    a(f"s_and_b32 {s(sT0)}, {s(sIt)}, 63")
    a("s_cbranch_scc1 L_nsw")
    a(f"s_cmp_eq_u32 {s(sIt)}, 128")
    a("s_cbranch_scc1 L_drain")
    a(f"s_mov_b32 {s(sK)}, s56"); a(f"s_mov_b32 {s(sK+1)}, s57")
    a(f"s_mov_b32 {s(sHB)}, {s(sHB0)}")
    a.label("L_nsw")
    a(f"s_mul_i32 {s(sOff)}, {s(sRow)}, 768")
    a(f"s_add_u32 {s(sOff)}, {s(sOff)}, {s(sHB)}")
    a(f"s_bitcmp1_b32 {s(sIt)}, 0")
    a("s_cselect_b32 m0, 24576, 0")
    a(f"v_readlane_b32 {s(sD)}, {v(vF)}, {F_D}")
    a(f"s_mul_i32 {s(sT0)}, {s(sIt)}, 24")
    a(f"s_cmp_eq_u32 {s(sIt)}, 1")
    a(f"s_cselect_b32 {s(sD)}, {Dph0}, {s(sD)}")
    a(f"s_max_i32 {s(sD)}, {s(sD)}, {Dmin}")
    a(f"s_min_i32 {s(sD)}, {s(sD)}, {Dmax}")
    a(f"s_sub_u32 {s(sT0)}, {s(sT0)}, {s(sD)}")
    a(f"v_mov_b32 {v(vR)}, {s(sT0)}")
    order = sorted(range(Dmin, Dmax+1), key=lambda d: (abs(d - Dc - 0.25)))
    order.remove(Dph0); order.insert(0, Dph0)
    a(f"s_cmp_lg_u32 {s(sD)}, {order[0]}"); a("s_cbranch_scc1 L_disp")
    for d in [order[0], order[-1]] + order[1:-1]:
        if d == order[-1]:
            a.label("L_disp")
            for d2 in order[1:-1]:
                a(f"s_cmp_eq_u32 {s(sD)}, {d2}"); a(f"s_cbranch_scc1 L_D{d2}")
        a.label(f"L_D{d}")
        for j in range(4):
            a.label(f"L_c{d}_{j}", flush=(j > 0))
            a("s_waitcnt lgkmcnt(0)")
            a(f"v_readlane_b32 {s(sF)}, {v(vF)}, {j}")
            a(f"ds_read_b32 {v(vF)}, {v(vFa)}")
            a(f"s_cmp_lt_i32 {s(sF)}, {s(sNeed)}")
            a.lines.append(f"    s_cbranch_scc1 L_c{d}_{j}")
            for i in range(3):
                a(f"s_waitcnt vmcnt({d-1})")
                a(f"buffer_load_dwordx4 {v(vL16)}, {srd(sK)}, {s(sOff)} offen offset:{1024*i} nt lds")
            a(f"v_add_u32 {v(vR)}, 3, {v(vR)}")
            a(f"s_add_u32 m0, m0, {s(sStep)}")
            a(f"s_add_u32 {s(sOff)}, {s(sOff)}, {s(sStep)}")
            a(f"ds_write_b32 {v(vRa)}, {v(vR)}")
        a(f"s_add_u32 {s(sOff)}, {s(sOff)}, {s(sJmp)}")
        a(f"s_add_u32 {s(sNeed)}, {s(sNeed)}, 1")
        a(f"s_bitcmp0_b32 {s(sNeed)}, 0")
        a(f"s_cbranch_scc1 L_D{d}")
        a("s_branch L_next")
    a("; all loads issued: publish the last arrivals"); a.label("L_drain")
    for r in range(24, -1, -3):
        a(f"v_mov_b32 {v(vX)}, {TOT - r}")
        a(f"s_waitcnt vmcnt({r})")
        a(f"ds_write_b32 {v(vRa)}, {v(vX)}")
    if stamp == 2:
        a("s_waitcnt lgkmcnt(0)")
        a(f"v_writelane_b32 v12, {s(sSt+2)}, 1")
        a(f"s_memrealtime {sp(sSt+2)}")
        a("s_getreg_b32 s34, hwreg(HW_REG_XCC_ID)")
        a("s_getreg_b32 s35, hwreg(HW_REG_HW_ID)")
        mk(sWS, 74, WSB)
        a("s_waitcnt lgkmcnt(0)")
        a(f"v_writelane_b32 v12, {s(sSt)}, 0"); a(f"v_writelane_b32 v12, {s(sSt+2)}, 2"); a("v_writelane_b32 v12, s34, 4"); a("v_writelane_b32 v12, s35, 5")
        a(f"s_mul_i32 {s(sT0)}, s2, 1280"); a(f"s_add_u32 {s(sT0)}, {s(sT0)}, {STAMP_OFF + 4096}"); a(f"v_lshlrev_b32 {v(vX)}, 2, {v(vLane)}")
        for e in range(5):
            if e == 4: a("s_mov_b64 exec, 0xff")
            a(f"buffer_store_dword v{8+e}, {v(vX)}, {srd(sWS)}, {s(sT0)} offen offset:{256*e}")
    a("s_waitcnt lgkmcnt(0)")
    a("s_endpgm")

    vRd, vTa, vTw, vDn, vDc, vFL, vOne, vQl = 2, 3, 4, 5, 6, 7, 8, 9
    vS, vKz, vAK, vBK = 10, 12, 14, 16
    vC, vS1, vCnt = 20, 21, 22
    vB, vW, vQ, vBank = 24, 36, 48, 72
    vAcc = 72
    sW, sNd, sRdy, sPh, sCo, sSel0, sSel1, sHi, sLs, sRc = 78, 79, 80, 81, 82, 83, 84, 86, 88, 89
    a.label("L_other")
    cst(0)
    a(f"s_cmp_eq_u32 {s(sWave)}, 5")
    a("s_cbranch_scc1 L_helper")
    qr = vB
    vQo0, vQo1, vSg = qr+20, qr+21, qr+22
    a(f"s_sub_u32 {s(sW)}, {s(sWave)}, 1")
    a(f"v_lshlrev_b32 {v(vQo0)}, 3, {v(vLane)}")
    a(f"v_cmp_gt_u32 vcc, 24, {v(vLane)}")
    a(f"v_mov_b32 {v(vZ)}, 0xffffff40")
    a(f"v_mov_b32 {v(vX)}, 192")
    a(f"v_cndmask_b32 {v(vZ)}, {v(vZ)}, {v(vX)}, vcc")
    a(f"v_add_u32 {v(vQo1)}, {v(vQo0)}, {v(vZ)}")
    a(f"v_mov_b32 {v(vX)}, 0x80008000")
    a(f"v_cndmask_b32 {v(vSg)}, 0, {v(vX)}, vcc")
    a(f"v_lshrrev_b32 {v(vY)}, 4, {v(vLane)}")
    a(f"v_and_b32 {v(vZ)}, 15, {v(vLane)}")
    a(f"v_mul_u32_u24 {v(vC)}, 384, {v(vY)}")
    a(f"v_lshl_add_u32 {v(vC)}, {v(vZ)}, 3, {v(vC)}")
    a(f"v_cmp_lt_u32 {sp(sHi)}, 7, {v(vZ)}")
    a(f"v_mov_b32 {v(vS1)}, -64")
    a(f"v_mov_b32 {v(vX)}, 320")
    a(f"v_cndmask_b32 {v(vS1)}, {v(vX)}, {v(vS1)}, {sp(sHi)}")
    a(f"v_add_u32 {v(vS1)}, {v(vC)}, {v(vS1)}")
    a(f"s_lshl1_add_u32 {s(sT3)}, {s(sW)}, {s(sGrp)}")
    a(f"s_mul_i32 {s(sT3)}, {s(sT3)}, 768")
    a(f"s_lshl2_add_u32 {s(sRc)}, {s(sW)}, {s(sRow0)}")
    def mkhi(b, n):
        a(f"s_mov_b32 {s(b+2)}, {n}"); a(f"s_mov_b32 {s(b+3)}, 0x20000")
    def mklo(b, p):
        a(f"s_mov_b64 {sp(b)}, {sp(p)}")
    def qcs_loads():
        a(f"buffer_load_dwordx2 {vp(qr+16)}, {v(vQo0)}, {srd(sQC)}, 0 offen")
        a(f"buffer_load_dwordx2 {vp(qr+18)}, {v(vQo0)}, {srd(sQS)}, 0 offen")
    def q_loads(so, qr=qr):
        a(f"buffer_load_dwordx2 {vp(qr+0)}, {v(vQo0)}, {srd(sQ)}, {s(so)} offen")
        a(f"buffer_load_dwordx2 {vp(qr+2)}, {v(vQo1)}, {srd(sQ)}, {s(so)} offen")
        a(f"buffer_load_dwordx2 {vp(qr+4)}, {v(vQo0)}, {srd(sQ)}, {s(so)} offen offset:384")
        a(f"buffer_load_dwordx2 {vp(qr+6)}, {v(vQo1)}, {srd(sQ)}, {s(so)} offen offset:384")
    mkhi(sQ, 12288); mkhi(sQC, 384); mkhi(sQS, 384)
    mkhi(sC, 0 if "nocs" in dbg else CSB); mkhi(sS, 0 if "nocs" in dbg or "nosin" in dbg else CSB)
    a("s_waitcnt lgkmcnt(0)")
    cst(1)
    mklo(sQ, 48); mklo(sQC, 62); mklo(sQS, 64)
    q_loads(sT3); qcs_loads()
    mklo(sC, 66); mklo(sS, 68)
    def issue_cs(k):
        R = vBank + 12*k
        a(f"s_mul_i32 {s(sCo)}, {s(sRc)}, 384")
        a(f"s_add_u32 {s(sRc)}, {s(sRc)}, 2048")
        a(f"s_and_b32 {s(sRc)}, {s(sRc)}, 16383")
        for i in range(3):
            a(f"buffer_load_dwordx2 {vp(R+4*i)}, {v(vC)}, {srd(sC)}, {s(sCo)} offen offset:{128*i}")
            if i == 1:
                a(f"buffer_load_dwordx2 {vp(R+4*i+2)}, {v(vS1)}, {srd(sS)}, {s(sCo)} offen")
            else:
                a(f"buffer_load_dwordx2 {vp(R+4*i+2)}, {v(vC)}, {srd(sS)}, {s(sCo)} offen offset:{192 if i == 0 else 64}")
    LQ = min(LA, CSQ)
    for k in range(LQ):
        if k == CSB4:
            cst(2)
            a("s_barrier")
        issue_cs(k)
    if CSB4 >= LQ:
        cst(2)
        a("s_barrier")
    a(f"s_mov_b32 {s(sSel0)}, 0x05040100")
    a(f"s_mov_b32 {s(sSel1)}, 0x07060302")
    a(f"s_mul_i32 {s(sT0)}, {s(sW)}, 3072")
    a(f"v_lshl_add_u32 {v(vRd)}, {v(vC)}, 1, {s(sT0)}")
    a(f"s_lshl_b32 {s(sT0)}, {s(sW)}, 5")
    a(f"s_add_u32 {s(sT0)}, {s(sT0)}, {L_T}")
    a(f"v_lshl_add_u32 {v(vTa)}, {v(vY)}, 3, {s(sT0)}")
    a(f"v_lshrrev_b32 {v(vX)}, 3, {v(vZ)}")
    a(f"v_lshl_add_u32 {v(vTw)}, {v(vX)}, 10, {v(vTa)}")
    a(f"v_lshlrev_b32 {v(vQl)}, 4, {v(vZ)}")
    a(f"v_add_u32 {v(vQl)}, {L_QO}, {v(vQl)}")
    a(f"s_lshl2_add_u32 {s(sT0)}, {s(sW)}, {L_FL}")
    a(f"v_mov_b32 {v(vDn)}, {s(sT0)}")
    a(f"v_mov_b32 {v(vDc)}, 0")
    a(f"v_mov_b32 {v(vOne)}, 1")
    a(f"v_mov_b32 {v(vCnt)}, {L_FL + 4*F_K}")
    a(f"s_mul_i32 {s(sNd)}, {s(sW)}, 3")
    a(f"s_sub_u32 {s(sNd)}, {s(sNd)}, 9")
    a(f"s_mov_b32 {s(sRdy)}, 0")
    a(f"s_mov_b32 {s(sPh)}, 0")
    a(f"s_mul_i32 {s(sT0)}, {s(sW)}, 1536")
    a(f"s_add_u32 {s(sT0)}, {s(sT0)}, {L_QO}")
    a(f"v_lshl_add_u32 {v(vX)}, {v(vQo0)}, 1, {s(sT0)}")
    a(f"v_lshl_add_u32 {v(vY)}, {v(vQo1)}, 1, {s(sT0)}")
    def unpack(dst, src):
        a(f"v_lshlrev_b32 {v(dst)}, 16, {v(src)}"); a(f"v_and_b32 {v(dst+1)}, 0xffff0000, {v(src)}")
        a(f"v_lshlrev_b32 {v(dst+2)}, 16, {v(src+1)}"); a(f"v_and_b32 {v(dst+3)}, 0xffff0000, {v(src+1)}")
    t_ = vQ
    cF, sF_ = t_, t_+4
    def qprep_cs():
        a(f"v_xor_b32 {v(qr+18)}, {v(qr+18)}, {v(vSg)}"); a(f"v_xor_b32 {v(qr+19)}, {v(qr+19)}, {v(vSg)}")
        unpack(cF, qr+16); unpack(sF_, qr+18)
        a(f"v_and_b32 {v(vSg)}, 0x80000000, {v(vSg)}")
    def qprep_pair(vL0, vL1):
        a("s_mov_b32 exec_hi, 0xffff")
        for X in range(2):
            aF, bF = t_+8, t_+12
            rr = t_+16 + 4*X
            unpack(aF, qr+4*X); unpack(bF, qr+4*X+2)
            for e in range(0, 4, 2):
                a(f"v_pk_mul_f32 {vp(aF+e)}, {vp(aF+e)}, {vp(cF+e)}"); a(f"v_pk_mul_f32 {vp(bF+e)}, {vp(bF+e)}, {vp(sF_+e)}")
            for e in range(4):
                a(f"v_cvt_pk_bf16_f32 {v(aF+e)}, {v(aF+e)}, {v(bF+e)}")
            for e in range(4):
                a(f"v_and_b32 {v(bF+e)}, 0xffff0000, {v(aF+e)}"); a(f"v_lshlrev_b32 {v(aF+e)}, 16, {v(aF+e)}")
            for e in range(0, 4, 2):
                a(f"v_pk_add_f32 {vp(aF+e)}, {vp(aF+e)}, {vp(bF+e)}")
            for e in range(4):
                a(f"v_cvt_pk_bf16_f32 {v(rr+e)}, {v(aF+e)}, {v(aF+e)}")
            for e in range(4):
                a(f"v_xor_b32 {v(rr+e)}, {v(rr+e)}, {v(vSg)}")
            for e in range(4):
                a(f"ds_write_b16 {v(vL0)}, {v(rr+e)} offset:{768*X+4*e}")
                a(f"ds_write_b16_d16_hi {v(vL1)}, {v(rr+e)} offset:{768*X+4*e+2}")
        a("s_mov_b32 exec_hi, -1")
    cst(3)
    a(f"s_waitcnt vmcnt({6*LQ})")
    cst(4)
    qprep_cs(); qprep_pair(vX, vY)
    a(f"ds_write_b32 {v(vDn)}, {v(vOne)} offset:{4*F_Q}")
    for k in range(LQ, LA): issue_cs(k)
    cst(5)
    CEXP = (192.0 ** -0.5) * math.log2(math.e)
    def wait_ready(lbl):
        a(f"s_add_u32 {s(sNd)}, {s(sNd)}, 12")
        a(f"s_cmp_ge_i32 {s(sRdy)}, {s(sNd)}")
        a.lines.append(f"    s_cbranch_scc1 {lbl}g")
        a.lines.append(f"{lbl}:")
        a(f"ds_read_b32 {v(vY)}, {v(vFL)}")
        if csleep: a(f"s_sleep {csleep}")
        a("s_waitcnt lgkmcnt(0)")
        a(f"v_readlane_b32 {s(sRdy)}, {v(vY)}, {F_RDY}")
        a(f"s_cmp_lt_i32 {s(sRdy)}, {s(sNd)}")
        a.lines.append(f"    s_cbranch_scc1 {lbl}")
        a.lines.append(f"{lbl}g:")
    def fetch(par, X, dS, toff):
        a(f"ds_read_b32 {v(dS)}, {v(vTa)} offset:{toff}")
        for i in range(3):
            a(f"ds_read_b128 {v4(vB+4*i)}, {v(vRd)} offset:{24576*par + 12288*X + 256*i}")
        a(f"v_add_u32 {v(vDc)}, 1, {v(vDc)}")
        a(f"ds_write_b32 {v(vDn)}, {v(vDc)}")
    def lds_inc():
        a("s_mov_b64 exec, 1")
        a(f"ds_add_u32 {v(vCnt)}, {v(vOne)}")
        a("s_mov_b64 exec, -1")
        a(f"v_add_u32 {v(vCnt)}, 4, {v(vCnt)}")
    a("; ---- K pass: one head pair per iteration ----"); a.label("L_kph")
    a(f"s_add_u32 {s(sLs)}, {s(sPh)}, {F_Q}")
    a.label("L_kw")
    a(f"ds_read_b32 {v(vY)}, {v(vFL)}")
    a("s_waitcnt lgkmcnt(0)")
    a(f"v_readlane_b32 {s(sT0)}, {v(vY)}, {s(sLs)}")
    a(f"v_readlane_b32 {s(sT1)}, {v(vY)}, {F_T}")
    a(f"s_cmp_eq_u32 {s(sT0)}, 0")
    a("s_cbranch_scc1 L_kw")
    a(f"s_cmp_le_u32 {s(sT1)}, {s(sPh)}")
    a("s_cbranch_scc1 L_kw")
    for X in range(2):
        for i in range(3):
            a(f"ds_read_b128 {v4(vQ+12*X+4*i)}, {v(vQl)} offset:{768*X+256*i}")
    a(f"v_add_u32 {v(vQl)}, 1536, {v(vQl)}")
    a("s_waitcnt lgkmcnt(0)")
    PM = (0, 2, 1, 3)
    for k in range(8):
        R = vBank + 12*k
        a(f"s_cmp_lg_u32 {s(sPh)}, 0")
        a(f"s_cbranch_scc1 L_ncs{k}")
        if k == 0 and stampk == 0: cst(6)
        a(f"s_waitcnt vmcnt({6*(min(k+LA-1, 7) - k)})")
        if k == stampk - 1: cst(6)
        for i in range(3):
            for h in range(2):
                c0, s0 = R+4*i+h, R+4*i+2+h
                a(f"v_perm_b32 {v(vW+2*i+h)}, {v(s0)}, {v(c0)}, {s(sSel0)}")
                a(f"v_perm_b32 {v(s0)}, {v(s0)}, {v(c0)}, {s(sSel1)}")
        for i in range(3):
            a(f"v_mov_b64 {vp(R+4*i)}, {vp(vW+2*i)}")
        if k + LA < 8: issue_cs(k + LA)
        a.label(f"L_ncs{k}")
        for X in range(2):
            acc = vAK if X == 0 else vBK
            for i in range(3):
                for e in range(4):
                    a(f"v_dot2_f32_bf16 {v(vW+4*i+e)}, {v(R+4*i+PM[e])}, {v(vQ+12*X+4*i+e)}, 0")
            wait_ready(f"L_kr{k}{X}")
            fetch(k & 1, X, vS+X, 1024*X + 128*k)
            for i in range(3):
                B = vB + 4*i
                a(f"s_waitcnt lgkmcnt({3-i})")
                if i == 0: a(f"v_and_b32 {v(vKz)}, 0xffff0000, {v(vS+X)}")
                for e in range(4):
                    a(f"v_cvt_f32_i32 {v(B+e)}, {v(B+e)}")
                sel = "op_sel:[0,0] op_sel_hi:[1,0] neg_lo:[0,1] neg_hi:[0,1]"
                a(f"v_pk_add_f32 {vp(B)}, {vp(B)}, {vp(vKz)} {sel}")
                a(f"v_pk_add_f32 {vp(B+2)}, {vp(B+2)}, {vp(vKz)} {sel}")
                if i == 0:
                    a(f"v_pk_mul_f32 {vp(acc)}, {vp(B)}, {vp(vW)}")
                else:
                    a(f"v_pk_fma_f32 {vp(acc)}, {vp(B)}, {vp(vW+4*i)}, {vp(acc)}")
                a(f"v_pk_fma_f32 {vp(acc)}, {vp(B+2)}, {vp(vW+4*i+2)}, {vp(acc)}")
            a(f"v_add_f32 {v(acc)}, {v(acc)}, {v(acc+1)}")
            if X == 1:
                a(f"v_cndmask_b32 {v(vZ)}, {v(vS)}, {v(vS+1)}, {sp(sHi)}")
                a(f"v_lshlrev_b32 {v(vZ)}, 16, {v(vZ)}")
            a(f"v_add_f32_dpp {v(vX)}, {v(acc)}, {v(acc)} row_ror:8 row_mask:0xf bank_mask:{'0x3' if X == 0 else '0xc'}")
            if X == 1:
                a(f"v_mul_f32 {v(vZ)}, {hex(f2u(CEXP))}, {v(vZ)}")
                a(f"v_add_f32_dpp {v(vX)}, {v(vX)}, {v(vX)} row_half_mirror {DPPALL}")
                a(f"v_add_f32_dpp {v(vX)}, {v(vX)}, {v(vX)} quad_perm:[2,3,0,1] {DPPALL}")
                a(f"v_add_f32_dpp {v(vX)}, {v(vX)}, {v(vX)} quad_perm:[1,0,3,2] {DPPALL}")
                a(f"v_mul_f32 {v(vX)}, {v(vZ)}, {v(vX)}")
                a(f"ds_write_b32 {v(vTw)}, {v(vX)} offset:{128*k}")
    lds_inc()
    a(f"v_add_u32 {v(vTa)}, 2048, {v(vTa)}")
    a(f"v_add_u32 {v(vTw)}, 2048, {v(vTw)}")
    a(f"s_add_u32 {s(sPh)}, {s(sPh)}, 1")
    a(f"s_cmp_lt_u32 {s(sPh)}, 8")
    a("s_cbranch_scc1 L_kph")
    a(f"v_subrev_u32 {v(vTa)}, 16384, {v(vTa)}")
    a(f"s_mul_i32 {s(sT0)}, {s(sW)}, 1536")
    a(f"s_add_u32 {s(sT0)}, {s(sT0)}, {L_QO}")
    a(f"v_lshl_add_u32 {v(vQl)}, {v(vLane)}, 3, {s(sT0)}")
    a(f"s_mov_b32 {s(sPh)}, 0")
    a("; ---- V pass: one head pair per iteration ----"); a.label("L_vph")
    for i in range(0, 24, 2): a(f"v_mov_b64 {vp(vAcc+i)}, 0")
    a(f"s_mov_b32 {s(sLs)}, 0")
    a.label("L_vw")
    a(f"ds_read_b32 {v(vY)}, {v(vFL)}")
    a("s_waitcnt lgkmcnt(0)")
    a(f"v_readlane_b32 {s(sT0)}, {v(vY)}, {F_M}")
    a(f"v_readlane_b32 {s(sT1)}, {v(vY)}, {F_P}")
    a(f"s_add_u32 {s(sT0)}, {s(sT0)}, 2")
    a(f"s_min_u32 {s(sT1)}, {s(sT1)}, {s(sT0)}")
    a(f"s_cmp_le_u32 {s(sT1)}, {s(sPh)}")
    a("s_cbranch_scc1 L_vw")
    a.label("L_vit")
    for k in range(2):
        for X in range(2):
            wait_ready(f"L_vr{k}{X}")
            fetch(k, X, vS, 1024*X + 128*k)
            for i in range(3):
                B = vB + 4*i
                acc = vAcc + 12*X + 4*i
                a(f"s_waitcnt lgkmcnt({3-i})")
                for e in range(4):
                    a(f"v_cvt_f32_i32 {v(B+e)}, {v(B+e)}")
                sel = "op_sel:[0,0,0] op_sel_hi:[1,0,1]"
                a(f"v_pk_fma_f32 {vp(acc)}, {vp(B)}, {vp(vS)}, {vp(acc)} {sel}")
                a(f"v_pk_fma_f32 {vp(acc+2)}, {vp(B+2)}, {vp(vS)}, {vp(acc+2)} {sel}")
    a(f"v_add_u32 {v(vTa)}, 256, {v(vTa)}")
    a(f"s_add_u32 {s(sLs)}, {s(sLs)}, 1")
    a(f"s_cmp_lt_u32 {s(sLs)}, 4")
    a("s_cbranch_scc1 L_vit")
    for X in range(2):
        for i in range(3):
            r_ = vAcc + 12*X + 4*i
            a(f"v_permlane32_swap_b32 {v(r_)}, {v(r_+2)}")
            a(f"v_permlane32_swap_b32 {v(r_+1)}, {v(r_+3)}")
        for i in range(3):
            r_ = vAcc + 12*X + 4*i
            a(f"v_pk_add_f32 {vp(r_)}, {vp(r_)}, {vp(r_+2)}")
    for X in range(2):
        for i in range(3):
            r_ = vAcc + 12*X + 4*i
            a(f"v_permlane16_swap_b32 {v(r_)}, {v(r_+1)}")
        for i in range(3):
            r_ = vAcc + 12*X + 4*i
            a(f"v_add_f32 {v(vB+3*X+i)}, {v(r_)}, {v(r_+1)}")
    for i in range(3):
        a(f"ds_write_b64 {v(vQl)}, {vp(vB+2*i)} offset:{512*i}")
    lds_inc()
    a(f"v_add_u32 {v(vTa)}, 1024, {v(vTa)}")
    a(f"s_bitcmp0_b32 {s(sPh)}, 0")
    a(f"s_cselect_b32 {s(sT0)}, 1, -1")
    a(f"s_mul_i32 {s(sT0)}, {s(sT0)}, 6144")
    a(f"v_add_u32 {v(vQl)}, {s(sT0)}, {v(vQl)}")
    a(f"s_add_u32 {s(sPh)}, {s(sPh)}, 1")
    a(f"s_cmp_lt_u32 {s(sPh)}, 8")
    a("s_waitcnt lgkmcnt(0)")
    a("s_cbranch_scc1 L_vph")
    if stamp == 4:
        for e, r in enumerate([sSt] + CS): a(f"v_mov_b32 {v(24+e)}, {s(r)}")
        mk(sWS, 74, WSB)
        a(f"s_lshl2_add_u32 {s(sT0)}, s2, {s(sW)}")
        a(f"s_lshl_b32 {s(sT0)}, {s(sT0)}, 5")
        a(f"s_add_u32 {s(sT0)}, {s(sT0)}, {STAMP_OFF}")
        a(f"v_mov_b32 {v(vX)}, 0")
        a("s_mov_b64 exec, 1")
        a(f"buffer_store_dwordx4 {v4(24)}, {v(vX)}, {srd(sWS)}, {s(sT0)} offen")
        a(f"buffer_store_dwordx4 {v4(28)}, {v(vX)}, {srd(sWS)}, {s(sT0)} offen offset:16")
    a("s_endpgm")

    sE = 48
    sKS, sKZ, sVS, sVZ = 4, 8, 12, 16
    sTb, sA, sP, sPub, sRdA, sOwn, sM, sMv, sL, sSw, sSr, sR, sKp, sTm = 78, 79, 80, 81, 82, 83, 84, 85, 86, 87, 88, 89, 90, 96
    sMe, sPO, sSpin, sHc, sBk, sNm, sIx = 98, 32, 33, 34, 35, 36, 38
    vL16, vFb, vFo, vMask, vU, vCo, vPa, vOi, vMl = 2, 3, 4, 5, 6, 8, 9, 10, 11
    vFl, vKk, vMr, vTg = 12, 13, 20, 21
    a("; ==== helper wave ===="); a.label("L_helper")
    a(f"s_memrealtime {sp(sTm)}")
    def code_pf(lbl, first, n):
        a(f"s_getpc_b64 {sp(sT0)}")
        a.lines.append(f"{lbl}:")
        a(f"s_sub_u32 {s(sT0)}, {s(sT0)}, {lbl}-{first}")
        a(f"s_subb_u32 {s(sT1)}, {s(sT1)}, 0")
        a(f"v_lshlrev_b32 {v(vY)}, 7, {v(vLane)}")
        for k in range(n):
            if k: a(f"v_add_u32 {v(vY)}, 8192, {v(vY)}")
            a(f"v_min_u32 {v(vZ)}, L_end-{first}, {v(vY)}")
            a(f"global_load_dword {v(vU)}, {v(vZ)}, {sp(sT0)}")
    vSo = 22
    a(f"v_bfe_u32 {v(vSo)}, {v(vLane)}, 2, 3")
    a(f"v_lshl_add_u32 {v(vSo)}, {v(vSo)}, 11, {s(sRow0)}")
    a(f"v_and_b32 {v(vSo)}, 16383, {v(vSo)}")
    a(f"v_lshrrev_b32 {v(vY)}, 5, {v(vLane)}")
    a(f"v_lshl_add_u32 {v(vSo)}, {v(vY)}, 14, {v(vSo)}")
    a(f"v_and_b32 {v(vY)}, 3, {v(vLane)}")
    a(f"v_lshlrev_b32 {v(vY)}, 3, {v(vY)}")
    a(f"v_lshl_add_u32 {v(vSo)}, {v(vSo)}, 1, {v(vY)}")
    a(f"s_lshl_b32 {s(sR)}, {s(sGrp)}, 16")
    a(f"v_lshlrev_b32 {v(vL16)}, 4, {v(vLane)}")
    nb = 0 if "nosc" in dbg else SCB
    for b in (sKS, sKZ, sVS, sVZ): mkhi(b, nb)
    a("s_waitcnt lgkmcnt(0)")
    mklo(sKS, 52); mklo(sKZ, 54); mklo(sVS, 58); mklo(sVZ, 60)
    vG = 72
    def sc_loads(p):
        for n, b in enumerate((sKS, sKZ, sVS, sVZ)):
            a(f"buffer_load_dwordx2 {vp(vG+8*p+2*n)}, {v(vSo)}, {srd(b)}, {s(sR)} offen")
        a(f"s_add_u32 {s(sR)}, {s(sR)}, {4*32768}")
    sc_loads(0)
    a("s_barrier")
    for n in range(1, SE+1): sc_loads(n)
    mk(sWS, 74, WSB); mk(sDB, 72, 256); mk(sOUT, 70, 12288)
    mk(sQ, 48, 12288); mk(sQC, 62, 384); mk(sQS, 64, 384)
    a(f"v_lshlrev_b32 {v(vQo0)}, 3, {v(vLane)}")
    a(f"v_cmp_gt_u32 vcc, 24, {v(vLane)}")
    a(f"v_mov_b32 {v(vZ)}, 0xffffff40")
    a(f"v_mov_b32 {v(vX)}, 192")
    a(f"v_cndmask_b32 {v(vZ)}, {v(vZ)}, {v(vX)}, vcc")
    a(f"v_add_u32 {v(vQo1)}, {v(vQo0)}, {v(vZ)}")
    a(f"v_mov_b32 {v(vX)}, 0x80008000")
    a(f"v_cndmask_b32 {v(vSg)}, 0, {v(vX)}, vcc")
    a(f"s_mov_b32 {s(sTb)}, {s(sTm)}")
    a(f"s_mov_b32 {s(sT2)}, 0x05040100")
    a(f"s_mov_b32 {s(sT3)}, 0x07060302")
    a(f"v_lshlrev_b32 {v(vPa)}, 1, {v(vL16)}")
    a(f"v_add_u32 {v(vPa)}, {L_T}, {v(vPa)}")
    a(f"v_mov_b32 {v(vFb)}, {L_FL}")
    a(f"v_mov_b32 {v(vFo)}, 0")
    a(f"v_mov_b32 {v(vMask)}, 0xff")
    vE, vQd = 48, 136
    def claim():
        a(f"s_mul_i32 {s(sE+1)}, {s(sTb)}, 0x9e3779b1")
        a(f"s_lshr_b32 {s(sT1)}, {s(sE+1)}, 15")
        a(f"s_xor_b32 {s(sE+1)}, {s(sE+1)}, {s(sT1)}")
        a(f"s_mul_i32 {s(sE+1)}, {s(sE+1)}, 0x85ebca6b")
        a(f"s_lshr_b32 {s(sT1)}, {s(sE+1)}, 13")
        a(f"s_xor_b32 {s(sE+1)}, {s(sE+1)}, {s(sT1)}")
        a(f"s_max_u32 {s(sE+1)}, {s(sE+1)}, 1")
        a(f"v_mov_b32 v14, {s(sE+1)}")
        a("v_mov_b32 v15, 0")
        a("s_mov_b64 exec, 1")
        a(f"buffer_atomic_cmpswap v[14:15], {v(vFo)}, {srd(sDB)}, 0 offen sc0 sc1")
        a("s_waitcnt vmcnt(0)")
        a(f"v_readfirstlane_b32 {s(sE)}, v14")
        a("s_mov_b64 exec, -1")
        a(f"s_cmp_eq_u32 {s(sE)}, 0")
        a(f"s_cselect_b32 {s(sE)}, {s(sE+1)}, {s(sE)}")
    for p in range(8):
        g = vG + 8*p
        e = vE + 8*(p & 1)
        a(f"s_waitcnt vmcnt({4*(min(p+SLA-1, 7)-p) + (18 if p <= SE else 0) if p else 4*SE})")
        if p and p + SLA < 8: sc_loads(p + SLA)
        for h in range(2):
            a(f"v_perm_b32 {v(e+4*h+0)}, {v(g+2+h)}, {v(g+0+h)}, {s(sT2)}")
            a(f"v_perm_b32 {v(e+4*h+1)}, {v(g+6+h)}, {v(g+4+h)}, {s(sT2)}")
            a(f"v_perm_b32 {v(e+4*h+2)}, {v(g+2+h)}, {v(g+0+h)}, {s(sT3)}")
            a(f"v_perm_b32 {v(e+4*h+3)}, {v(g+6+h)}, {v(g+4+h)}, {s(sT3)}")
        a(f"v_mov_b32 {v(vY)}, {p+1}")
        a(f"ds_write_b128 {v(vPa)}, {v4(e)} offset:{2048*p}")
        a(f"ds_write_b128 {v(vPa)}, {v4(e+4)} offset:{2048*p+16}")
        a(f"ds_write_b32 {v(vFb)}, {v(vY)} offset:{4*F_T}")
        a("s_waitcnt lgkmcnt(3)")
        if p == 0:
            a(f"s_mov_b32 {s(sE)}, 0")
            a("s_cmp_lg_u32 s2, 0")
            a("s_cbranch_scc1 L_ne0")
            claim()
            a.label("L_ne0")
            qcs_loads()
            a(f"s_mul_i32 {s(sT0)}, {s(sGrp)}, 768")
            for n in range(4):
                a(f"s_add_u32 {s(sT0)}, {s(sT0)}, {(16 if n == 0 else 4)*384}")
                q_loads(sT0, vQd + 8*n)
            for n in range(SE+1, SLA+1): sc_loads(n)
    if codepf & 1:
        a(f"s_getpc_b64 {sp(sT0)}")
        a.lines.append("L_pc:")
        a(f"s_sub_u32 {s(sT0)}, {s(sT0)}, L_pc-{KN}")
        a(f"s_subb_u32 {s(sT1)}, {s(sT1)}, 0")
        a(f"s_lshr_b32 {s(sT2)}, s2, 3")
        a(f"v_lshl_add_u32 {v(vY)}, {v(vLane)}, 5, {s(sT2)}")
        a(f"v_lshlrev_b32 {v(vY)}, 7, {v(vY)}")
        a(f"v_min_u32 {v(vY)}, L_end-{KN}, {v(vY)}")
        a("s_mov_b64 exec, 0x7f")
        a(f"global_load_dword {v(vU)}, {v(vY)}, {sp(sT0)}")
        a("s_mov_b64 exec, -1")
    a(f"v_lshlrev_b32 {v(vX)}, 1, {v(vQo0)}")
    a(f"v_lshlrev_b32 {v(vY)}, 1, {v(vQo1)}")
    a(f"v_add_u32 {v(vX)}, {L_QO + 4*1536}, {v(vX)}")
    a(f"v_add_u32 {v(vY)}, {L_QO + 4*1536}, {v(vY)}")
    a(f"v_mov_b32 {v(vZ)}, {L_FL + 4*(F_Q+4)}")
    a(f"s_mov_b32 {s(sR)}, 0")
    a(f"s_waitcnt vmcnt({codepf & 1}) lgkmcnt(0)")
    qprep_cs()
    a.label("L_hq")
    for n in range(0, 8, 2): a(f"v_mov_b64 {vp(qr+n)}, {vp(vQd+n)}")
    for n in range(0, 24, 2): a(f"v_mov_b64 {vp(vQd+n)}, {vp(vQd+8+n)}")
    qprep_pair(vX, vY)
    a(f"ds_write_b32 {v(vZ)}, {v(vMask)}")
    a(f"s_add_u32 {s(sR)}, {s(sR)}, 1")
    a(f"v_add_u32 {v(vX)}, 1536, {v(vX)}")
    a(f"v_add_u32 {v(vY)}, 1536, {v(vY)}")
    a(f"v_add_u32 {v(vZ)}, 4, {v(vZ)}")
    a(f"s_cmp_lt_u32 {s(sR)}, 4")
    a("s_waitcnt lgkmcnt(0)")
    a("s_cbranch_scc1 L_hq")
    a(f"s_cmp_lg_u32 {s(sE)}, 0")
    a("s_cbranch_scc1 L_epd")
    a.label("L_epw")
    a(f"s_sleep {hsleep}")
    a(f"ds_read_b32 {v(vY)}, {v(vFL)}")
    a("s_waitcnt lgkmcnt(0)")
    a(f"v_readlane_b32 {s(sR)}, {v(vY)}, {F_RDY}")
    a(f"s_cmp_lt_i32 {s(sR)}, {EPAT}")
    a("s_cbranch_scc1 L_epw")
    a("s_mov_b64 exec, 1")
    a(f"buffer_load_dword {v(vY)}, {v(vFo)}, {srd(sDB)}, 0 offen")
    a("s_waitcnt vmcnt(0)")
    a(f"v_readfirstlane_b32 {s(sE)}, {v(vY)}")
    a("s_mov_b64 exec, -1")
    a(f"s_cmp_lg_u32 {s(sE)}, 0")
    a("s_cbranch_scc1 L_epd")
    claim()
    a.label("L_epd")
    a("s_waitcnt vmcnt(0)")
    a(f"s_lshr_b32 {s(sE+1)}, {s(sE)}, 8")
    a(f"s_lshr_b32 {s(sE+2)}, {s(sE)}, 16")
    a(f"s_lshr_b32 {s(sE+3)}, {s(sE)}, 24")
    a(f"s_mov_b32 {s(sA)}, 0"); a(f"s_mov_b32 {s(sP)}, 0"); a(f"s_mov_b32 {s(sMv)}, 0"); a(f"s_mov_b32 {s(sM)}, 0"); a(f"s_mov_b32 {s(sOwn)}, 0")
    a(f"s_movk_i32 {s(sPub)}, {24*C0 if ctl else 30000}"); a(f"s_movk_i32 {s(sRdA)}, {24*(C0+DLY) if ctl else 30000}")
    a(f"s_mov_b32 {s(sL)}, {F_K}")
    if spr:
        assert NS == 16
        a(f"s_lshr_b32 {s(sT0)}, s2, 4"); a(f"s_and_b32 {s(sT1)}, s2, 15")
        a(f"s_cmp_eq_u32 {s(sT0)}, {s(sT1)}"); a(f"s_cselect_b32 {s(sIx)}, {s(sT0)}, 255")
    else:
        a(f"s_mov_b32 {s(sIx)}, s2")
    a(f"s_mul_i32 {s(sSw)}, {s(sIx)}, {STR}"); a(f"s_add_u32 {s(sSw)}, {s(sSw)}, {CT_OFF}")
    a(f"s_mov_b32 {s(sSr)}, {CT_OFF}")
    a(f"v_mul_u32_u24 {v(vCo)}, {STR}, {v(vLane)}")
    a(f"v_cmp_gt_u32 {sp(sNm)}, {NS}, {v(vLane)}")
    a(f"v_and_b32 {v(vU)}, 1, {v(vLane)}")
    a(f"v_cmp_eq_u32 {sp(sMe)}, 0, {v(vU)}")
    a(f"v_lshrrev_b32 {v(vX)}, 5, {v(vLane)}")
    a(f"v_lshlrev_b32 {v(vMl)}, 4, {v(vX)}")
    a(f"v_add_u32 {v(vMl)}, {L_FL + 4*F_ML}, {v(vMl)}")
    a(f"v_lshlrev_b32 {v(vOi)}, 3, {v(vLane)}")
    a(f"v_add_u32 {v(vOi)}, {L_QO}, {v(vOi)}")
    a(f"v_lshlrev_b32 {v(vMr)}, 3, {v(vU)}")
    a(f"v_add_u32 {v(vMr)}, {L_FL + 4*F_ML}, {v(vMr)}")
    a(f"v_cndmask_b32 {v(vTg)}, {v(vMask)}, 0, {sp(sMe)}")
    SH = 20
    a("; pace control, softmax weights of finished head pairs"); a.label("L_hl")
    a(f"s_sleep {hsleep}")
    a(f"ds_read_b32 {v(vY)}, {v(vFL)}")
    a(f"s_memrealtime {sp(sTm)}")
    a("s_waitcnt lgkmcnt(0)")
    a(f"v_readlane_b32 {s(sR)}, {v(vY)}, {F_RDY}")
    a(f"v_readlane_b32 {s(sKp)}, {v(vY)}, {s(sL)}")
    a(f"s_sub_u32 {s(sTm)}, {s(sTm)}, {s(sTb)}")
    a(f"s_lshl_b32 {s(sTm)}, {s(sTm)}, 8")
    a(f"s_mul_i32 {s(sT0)}, {s(sP)}, {s(sR)}")
    a(f"s_add_u32 {s(sT0)}, {s(sT0)}, {s(sA)}")
    a(f"s_sub_u32 {s(sT0)}, {s(sTm)}, {s(sT0)}")
    a(f"s_cmp_eq_u32 {s(sP)}, 0")
    a(f"s_cselect_b32 {s(sT0)}, 0, {s(sT0)}")
    a(f"s_mul_i32 {s(sT0)}, {s(sT0)}, {G}")
    a(f"s_add_u32 {s(sT0)}, {s(sT0)}, {(Dc << SH) + (1 << (SH-1))}")
    a(f"s_ashr_i32 {s(sT0)}, {s(sT0)}, {SH}")
    a(f"s_max_i32 {s(sT0)}, {s(sT0)}, {Dmin}")
    a(f"s_min_i32 {s(sT0)}, {s(sT0)}, {Dmax}")
    a(f"v_mov_b32 {v(vX)}, {s(sT0)}")
    a(f"ds_write_b32 {v(vFb)}, {v(vX)} offset:{4*F_D}")
    a(f"s_cmp_ge_i32 {s(sR)}, {s(sPub)}")
    a("s_cbranch_scc1 L_pub")
    a(f"s_cmp_ge_i32 {s(sR)}, {s(sRdA)}")
    a("s_cbranch_scc1 L_rd")
    a(f"s_cmp_eq_u32 {s(sKp)}, 4")
    a("s_cbranch_scc1 L_prep")
    a(f"s_cmp_lt_i32 {s(sR)}, {TOT - 24*6}")
    a("s_cbranch_scc1 L_hl")
    a(f"s_cmp_eq_u32 {s(sL)}, {F_Z}")
    a("s_cbranch_scc0 L_hl")
    a("s_branch L_late")
    a.label("L_pub")
    a(f"s_cmp_eq_u32 {s(sP)}, 0")
    a(f"s_cselect_b32 {s(sT0)}, {P0}, {s(sP)}")
    a(f"s_sub_u32 {s(sT1)}, {s(sR)}, {s(sPub)}")
    a(f"s_mul_i32 {s(sT0)}, {s(sT0)}, {s(sT1)}")
    a(f"s_sub_u32 {s(sOwn)}, {s(sTm)}, {s(sT0)}")
    a(f"s_addk_i32 {s(sPub)}, {24*CP}")
    a(f"s_cmp_ge_u32 {s(sIx)}, {NS}")
    a("s_cbranch_scc1 L_hl")
    a(f"s_lshl_b32 {s(sT0)}, {s(sTb)}, 8")
    a(f"s_add_u32 {s(sT0)}, {s(sT0)}, {s(sOwn)}")
    a(f"v_mov_b32 v14, {s(sT0)}")
    a(f"v_mov_b32 v15, {s(sE)}")
    a("s_mov_b64 exec, 1")
    a(f"buffer_store_dwordx2 v[14:15], {v(vFo)}, {srd(sWS)}, {s(sSw)} offen sc0 sc1")
    a("s_mov_b64 exec, -1")
    a(f"s_add_u32 {s(sSw)}, {s(sSw)}, {NS*STR}")
    a("s_branch L_hl")
    def xrow16(op, x, t1):
        a(f"v_mov_b32 {v(t1)}, {v(x)}")
        a(f"v_permlane16_swap_b32 {v(x)}, {v(t1)}")
        a(f"{op} {v(x)}, {v(x)}, {v(t1)}")
    def xrows(op, x, t1):
        a(f"v_mov_b32 {v(t1)}, {v(x)}")
        a(f"v_permlane32_swap_b32 {v(x)}, {v(t1)}")
        a(f"{op} {v(x)}, {v(x)}, {v(t1)}")
        xrow16(op, x, t1)
    def red16(op, regs):
        for m in ("quad_perm:[1,0,3,2]", "quad_perm:[2,3,0,1]", "row_half_mirror", "row_mirror"):
            for r in regs: a(f"{op}_dpp {v(r)}, {v(r)}, {v(r)} {m} {DPPALL}")
    a.label("L_rd")
    a(f"s_mov_b64 exec, {sp(sNm)}")
    a(f"buffer_load_dwordx2 v[14:15], {v(vCo)}, {srd(sWS)}, {s(sSr)} offen")
    a("s_mov_b64 exec, -1")
    a(f"s_add_u32 {s(sSr)}, {s(sSr)}, {NS*STR}")
    a(f"s_lshl_b32 {s(sT0)}, {s(sTb)}, 8")
    a(f"s_add_u32 {s(sT0)}, {s(sT0)}, {s(sOwn)}")
    a("s_waitcnt vmcnt(0)")
    a(f"v_cmp_eq_u32 vcc, {s(sE)}, v15")
    a(f"v_subrev_u32 v14, {s(sT0)}, v14")
    a(f"s_and_b64 vcc, vcc, {sp(sNm)}")
    a("v_cvt_f32_i32 v14, v14")
    a(f"s_bcnt1_i32_b64 {s(sT1)}, vcc")
    a("v_cndmask_b32 v14, 0, v14, vcc")
    a(f"v_cvt_f32_u32 v15, {s(sT1)}")
    red16("v_add_f32", [14])
    a("v_rcp_f32 v15, v15")
    if NS > 16: xrows("v_add_f32", 14, vU)
    a("v_mul_f32 v14, v14, v15")
    a("v_cvt_i32_f32 v14, v14")
    a(f"s_sub_u32 {s(sT2)}, {s(sRdA)}, {24*DLY}")
    a(f"s_addk_i32 {s(sRdA)}, {24*CP}")
    a(f"v_readfirstlane_b32 {s(sT0)}, v14")
    a(f"s_mov_b32 {s(sT3)}, {s(sMv)}")
    a(f"s_min_u32 {s(sMv)}, {s(sT1)}, 1")
    a(f"s_cmp_eq_u32 {s(sT1)}, 0")
    a("s_cbranch_scc1 L_hl")
    a(f"s_add_u32 {s(sT0)}, {s(sT0)}, {s(sOwn)}")
    a(f"s_sub_u32 {s(sT1)}, {s(sT0)}, {s(sM)}")
    a(f"s_mov_b32 {s(sM)}, {s(sT0)}")
    a(f"s_mul_hi_u32 {s(sT1)}, {s(sT1)}, {round(2**32/(24*CP))}")
    a(f"s_cmp_eq_u32 {s(sT3)}, 0")
    a(f"s_cselect_b32 {s(sP)}, {P0}, {s(sT1)}")
    a(f"s_max_u32 {s(sP)}, {s(sP)}, 1")
    a(f"s_mul_i32 {s(sT1)}, {s(sP)}, {s(sT2)}")
    a(f"s_sub_u32 {s(sA)}, {s(sT0)}, {s(sT1)}")
    a("s_branch L_hl")
    a.label("L_prep")
    a(f"s_cmp_ge_u32 {s(sL)}, {F_V}")
    a("s_cbranch_scc1 L_mrg")
    g = 24
    a(f"ds_read_b128 {v4(g)}, {v(vPa)}")
    a(f"ds_read_b128 {v4(g+4)}, {v(vPa)} offset:16")
    a(f"s_add_u32 {s(sL)}, {s(sL)}, 1")
    a(f"s_sub_u32 {s(sT0)}, {s(sL)}, {F_K}")
    a(f"v_mov_b32 {v(vZ)}, {s(sT0)}")
    a("s_waitcnt lgkmcnt(0)")
    vMx, vZs, vLs = 40, 41, 42
    a(f"v_max_f32 {v(vMx)}, {v(g)}, {v(g+2)}")
    a(f"v_max3_f32 {v(vMx)}, {v(vMx)}, {v(g+4)}, {v(g+6)}")
    for e in range(4): a(f"v_lshlrev_b32 {v(g+8+e)}, 16, {v(g+2*e+1)}")
    red16("v_max_f32", [vMx])
    for e in range(4): a(f"v_and_b32 {v(g+12+e)}, 0xffff0000, {v(g+2*e+1)}")
    xrow16("v_max_f32", vMx, vU)
    for e in range(4): a(f"v_sub_f32 {v(g+2*e)}, {v(g+2*e)}, {v(vMx)}")
    for e in range(4): a(f"v_exp_f32 {v(g+2*e)}, {v(g+2*e)}")
    a(f"v_add_f32 {v(vLs)}, {v(g)}, {v(g+2)}")
    a(f"v_add_f32 {v(vU)}, {v(g+4)}, {v(g+6)}")
    a(f"v_add_f32 {v(vLs)}, {v(vLs)}, {v(vU)}")
    for e in range(4): a(f"v_mul_f32 {v(g+2*e)}, {v(g+2*e)}, {v(g+8+e)}")
    a(f"ds_write_b128 {v(vPa)}, {v4(g)}")
    a(f"ds_write_b128 {v(vPa)}, {v4(g+4)} offset:16")
    a(f"v_mul_f32 {v(vZs)}, {v(g)}, {v(g+12)}")
    for e in range(1, 4): a(f"v_fmac_f32 {v(vZs)}, {v(g+2*e)}, {v(g+12+e)}")
    red16("v_add_f32", [vLs, vZs])
    xrow16("v_add_f32", vLs, vU)
    xrow16("v_add_f32", vZs, vU)
    a(f"v_sub_f32 {v(vZs)}, 0, {v(vZs)}")
    a(f"v_mov_b32 {v(vMx+3)}, {v(vZs)}")
    a(f"ds_write_b128 {v(vMl)}, {v4(vMx)}")
    a(f"ds_write_b32 {v(vFb)}, {v(vZ)} offset:{4*F_P}")
    a(f"v_add_u32 {v(vPa)}, 2048, {v(vPa)}")
    a(f"v_add_u32 {v(vMl)}, 32, {v(vMl)}")
    a(f"s_cmp_eq_u32 {s(sL)}, {F_V}")
    a("s_waitcnt lgkmcnt(0)")
    a("s_cbranch_scc0 L_hl")
    a(f"v_add_u32 {v(vPa)}, {L_T}, {v(vL16)}")
    a("s_branch L_hl")
    vDp, vMz, vO = 88, 112, 80
    def mread():
        for n in range(6):
            a(f"ds_read2st64_b64 {v4(vDp+4*n)}, {v(vOi)} offset0:{2*n} offset1:{2*n+1}")
    def mzread():
        for X in range(2): a(f"ds_read_b64 {vp(vMz+2*X)}, {v(vMr)} offset:{16*X}")
    def mztag():
        for X in range(2): a(f"v_bfi_b32 {v(vO+4*X+3)}, {v(vTg)}, {s(sE+3)}, {v(vMz+2*X)}")
        a(f"v_mov_b32 {v(vMz)}, {v(vMz+3)}")
    def msum():
        for i in range(3):
            a(f"v_pk_add_f32 {vp(vDp+2*i)}, {vp(vDp+2*i)}, {vp(vDp+6+2*i)}")
            a(f"v_pk_add_f32 {vp(vDp+12+2*i)}, {vp(vDp+12+2*i)}, {vp(vDp+18+2*i)}")
        for i in range(3):
            a(f"v_pk_add_f32 {vp(vDp+2*i)}, {vp(vDp+2*i)}, {vp(vMz)} op_sel:[0,{1 if i < 2 else 0}] op_sel_hi:[1,{1 if i < 1 else 0}]")
        for i in range(3):
            a(f"v_pk_add_f32 {vp(vDp+2*i)}, {vp(vDp+2*i)}, {vp(vDp+12+2*i)}")
    def mtag(X):
        for e in range(3): a(f"v_bfi_b32 {v(vO+4*X+e)}, {v(vMask)}, {s(sE+e)}, {v(vDp+3*X+e)}")
    a.label("L_mrg")
    mzread(); mread()
    a(f"s_add_u32 {s(sL)}, {s(sL)}, 1")
    a(f"s_sub_u32 {s(sT0)}, {s(sL)}, {F_V}")
    a(f"v_mov_b32 {v(vZ)}, {s(sT0)}")
    a(f"ds_write_b32 {v(vFb)}, {v(vZ)} offset:{4*F_M}")
    a(f"s_bitcmp1_b32 {s(sT0)}, 0")
    a(f"s_cselect_b32 {s(sT0)}, 1, -1")
    a(f"s_mul_i32 {s(sT0)}, {s(sT0)}, 6144")
    a(f"v_add_u32 {v(vOi)}, {s(sT0)}, {v(vOi)}")
    a(f"v_add_u32 {v(vMr)}, 32, {v(vMr)}")
    a(f"s_cmp_eq_u32 {s(sL)}, {F_V+7}")
    a(f"s_cselect_b32 {s(sL)}, {F_Z}, {s(sL)}")
    a("s_waitcnt lgkmcnt(0)")
    mztag(); msum(); mtag(0); mtag(1)
    a(f"ds_write_b128 {v(vPa)}, {v4(vO)}")
    a(f"ds_write_b128 {v(vPa)}, {v4(vO+4)} offset:1024")
    a(f"v_add_u32 {v(vPa)}, 2048, {v(vPa)}")
    a("s_waitcnt lgkmcnt(0)")
    a("s_branch L_hl")
    a.label("L_late")
    if codepf & 2: code_pf("L_pc2", "L_late", 1)
    PSTEP = 4 * NPART * 1024
    a(f"s_and_b32 {s(sPO)}, s2, 0x70")
    a(f"s_and_b32 {s(sT0)}, s2, 7")
    a(f"s_lshl1_add_u32 {s(sPO)}, {s(sT0)}, {s(sPO)}")
    a(f"s_lshr_b32 {s(sT0)}, s2, 7")
    a(f"s_add_u32 {s(sPO)}, {s(sPO)}, {s(sT0)}")
    a(f"s_lshl_b32 {s(sT0)}, {s(sGrp)}, 8")
    a(f"s_add_u32 {s(sPO)}, {s(sPO)}, {s(sT0)}")
    a(f"s_lshl_b32 {s(sPO)}, {s(sPO)}, 10")
    a(f"s_add_u32 {s(sT2)}, {s(sPO)}, {NPART*1024}")
    a(f"s_lshr_b32 {s(sHc)}, s2, 3")
    a(f"s_and_b32 {s(sBk)}, s2, 7")
    a(f"v_lshrrev_b32 {v(vX)}, 3, {v(vLane)}")
    a(f"v_and_b32 {v(vKk)}, 7, {v(vLane)}")
    a(f"v_lshlrev_b32 {v(vX)}, 10, {v(vX)}")
    a(f"v_lshl_add_u32 {v(vFl)}, {v(vKk)}, 4, {v(vX)}")
    a(f"v_lshlrev_b32 {v(vKk)}, 3, {v(vKk)}")
    a(f"s_mov_b32 {s(sSpin)}, 0")
    vPt = 24
    a(f"v_add_u32 {v(vPa)}, {L_T}, {v(vL16)}")
    for n in range(14):
        a(f"ds_read_b128 {v4(vPt+4*n)}, {v(vPa)} offset:{1024*n}")
        if n == 9: a("s_waitcnt lgkmcnt(0)")
    mzread()
    a("s_waitcnt lgkmcnt(0)")
    mztag()
    a.label("L_hl2")
    a(f"ds_read_b32 {v(vY)}, {v(vFL)}")
    a(f"s_memrealtime {sp(sTm)}")
    a("s_waitcnt lgkmcnt(0)")
    a(f"v_readlane_b32 {s(sR)}, {v(vY)}, {F_RDY}")
    a(f"s_sub_u32 {s(sTm)}, {s(sTm)}, {s(sTb)}")
    a(f"s_lshl_b32 {s(sTm)}, {s(sTm)}, 8")
    a(f"s_mul_i32 {s(sT0)}, {s(sP)}, {s(sR)}")
    a(f"s_add_u32 {s(sT0)}, {s(sT0)}, {s(sA)}")
    a(f"s_sub_u32 {s(sT0)}, {s(sTm)}, {s(sT0)}")
    a(f"s_cmp_eq_u32 {s(sP)}, 0")
    a(f"s_cselect_b32 {s(sT0)}, 0, {s(sT0)}")
    a(f"s_mul_i32 {s(sT0)}, {s(sT0)}, {G}")
    a(f"s_add_u32 {s(sT0)}, {s(sT0)}, {(Dc << SH) + (1 << (SH-1))}")
    a(f"s_ashr_i32 {s(sT0)}, {s(sT0)}, {SH}")
    a(f"s_max_i32 {s(sT0)}, {s(sT0)}, {Dmin}")
    a(f"s_min_i32 {s(sT0)}, {s(sT0)}, {Dmax}")
    a(f"v_mov_b32 {v(vX)}, {s(sT0)}")
    a(f"ds_write_b32 {v(vFb)}, {v(vX)} offset:{4*F_D}")
    a(f"s_cmp_lt_i32 {s(sR)}, {TOT - FLT}")
    a("s_cbranch_scc1 L_hl2")
    if stamp == 3: a("s_memrealtime s[60:61]")
    for p_ in range(7):
        a(f"buffer_store_dwordx4 {v4(vPt+8*p_)}, {v(vL16)}, {srd(sWS)}, {s(sPO)} offen {stf}")
        a(f"buffer_store_dwordx4 {v4(vPt+8*p_+4)}, {v(vL16)}, {srd(sWS)}, {s(sT2)} offen {stf}")
        a(f"s_add_u32 {s(sPO)}, {s(sPO)}, {PSTEP}")
        a(f"s_add_u32 {s(sT2)}, {s(sT2)}, {PSTEP}")
    a.label("L_w7")
    a(f"ds_read_b32 {v(vY)}, {v(vFL)}")
    mread()
    a("s_waitcnt lgkmcnt(6)")
    a(f"v_readlane_b32 {s(sT0)}, {v(vY)}, {F_V+7}")
    a(f"s_cmp_lt_u32 {s(sT0)}, 4")
    a("s_waitcnt lgkmcnt(0)")
    a("s_cbranch_scc1 L_w7")
    if stamp in (2, 3): a("s_memrealtime s[62:63]")
    msum(); mtag(0)
    a(f"buffer_store_dwordx4 {v4(vO)}, {v(vL16)}, {srd(sWS)}, {s(sPO)} offen {stf}")
    mtag(1)
    a(f"buffer_store_dwordx4 {v4(vO+4)}, {v(vL16)}, {srd(sWS)}, {s(sT2)} offen {stf}")
    a("; poll the 128 partial lines until every tag matches"); a.label("L_try")
    vFF, vFt, vO2 = 88, 152, 14
    a(f"s_mul_i32 {s(sT0)}, {s(sHc)}, {NPART*1024}")
    a(f"s_lshl_b32 {s(sT3)}, {s(sBk)}, 7")
    a(f"s_add_u32 {s(sT0)}, {s(sT0)}, {s(sT3)}")
    for i in range(NLD):
        a(f"buffer_load_dwordx4 {v4(vFF+4*i)}, {v(vFl)}, {srd(sWS)}, {s(sT0)} offen {ldf}")
        if i < NLD-1: a(f"s_add_u32 {s(sT0)}, {s(sT0)}, 8192")
    for i in range(NLD):
        a(f"s_waitcnt vmcnt({NLD-1-i})")
        for e in range(4):
            z = vU if e == 3 else vZ
            if i == 0 and e in (0, 3):
                a(f"v_xor_b32 {v(z)}, {s(sE+e)}, {v(vFF+e)}")
            else:
                a(f"v_bitop3_b32 {v(z)}, {v(z)}, {v(vFF+4*i+e)}, {s(sE+e)} bitop3:0xf6")
    a(f"v_and_b32 {v(vU)}, {v(vU)}, {v(vTg)}")
    a(f"v_and_or_b32 {v(vZ)}, {v(vZ)}, {v(vMask)}, {v(vU)}")
    a(f"v_cmp_ne_u32 vcc, 0, {v(vZ)}")
    a("s_cbranch_vccz L_cok")
    if psleep: a(f"s_sleep {psleep}")
    a(f"s_add_u32 {s(sSpin)}, {s(sSpin)}, 1")
    a(f"s_cmp_lt_u32 {s(sSpin)}, 200000")
    a("s_cbranch_scc1 L_try")
    a("; final combine and normalisation"); a.label("L_cok")
    if stamp in (2, 3): a("s_memrealtime s[64:65]")
    a(f"s_mul_i32 {s(sT1)}, {s(sHc)}, 384")
    a(f"s_and_b32 {s(sT3)}, {s(sBk)}, 1")
    a(f"s_lshl_b32 {s(sT3)}, {s(sT3)}, 6")
    a(f"s_add_u32 {s(sT1)}, {s(sT1)}, {s(sT3)}")
    a(f"s_andn2_b32 {s(sT3)}, {s(sBk)}, 1")
    a(f"s_add_u32 {s(sT1)}, {s(sT1)}, {s(sT3)}")
    a(f"v_max_f32 {v(vY)}, {v(vFF+3)}, {v(vFF+7)}")
    for i in range(2, NLD, 2):
        a(f"v_max3_f32 {v(vY)}, {v(vY)}, {v(vFF+4*i+3)}, {v(vFF+4*i+7)}")
    a(f"v_max_f32_dpp {v(vY)}, {v(vY)}, {v(vY)} row_ror:8 {DPPALL}")
    xrows("v_max_f32", vY, vU)
    a(f"v_mov_b32_dpp {v(vY)}, {v(vY)} quad_perm:[0,0,2,2] {DPPALL}")
    for i in range(NLD):
        a(f"v_sub_f32_dpp {v(vFt+i)}, {v(vFF+4*i+3)}, {v(vY)} quad_perm:[0,0,2,2] {DPPALL}")
    for i in range(NLD):
        a(f"v_exp_f32 {v(vFt+i)}, {v(vFt+i)}")
    for i in range(NLD):
        if i == 0:
            for e in range(3): a(f"v_mul_f32 {v(vO2+e)}, {v(vFF+e)}, {v(vFt)}")
            a(f"v_mul_f32_dpp {v(vO2+3)}, {v(vFF+3)}, {v(vFt)} quad_perm:[1,1,3,3] {DPPALL}")
        else:
            for e in range(3): a(f"v_fmac_f32 {v(vO2+e)}, {v(vFF+4*i+e)}, {v(vFt+i)}")
            a(f"v_fmac_f32_dpp {v(vO2+3)}, {v(vFF+4*i+3)}, {v(vFt+i)} quad_perm:[1,1,3,3] {DPPALL}")
    for e in range(4):
        a(f"v_add_f32_dpp {v(vO2+e)}, {v(vO2+e)}, {v(vO2+e)} row_ror:8 {DPPALL}")
    for e in range(4):
        a(f"v_mov_b32 {v(24+e)}, {v(vO2+e)}")
    for e in range(4):
        a(f"v_permlane32_swap_b32 {v(vO2+e)}, {v(24+e)}")
    for e in range(4):
        a(f"v_add_f32 {v(vO2+e)}, {v(vO2+e)}, {v(24+e)}")
    for e in range(4):
        a(f"v_mov_b32 {v(24+e)}, {v(vO2+e)}")
    for e in range(4):
        a(f"v_permlane16_swap_b32 {v(vO2+e)}, {v(24+e)}")
    for e in (3, 0, 1, 2):
        a(f"v_add_f32 {v(vO2+e)}, {v(vO2+e)}, {v(24+e)}")
    a(f"v_rcp_f32 {v(vX)}, {v(vO2+3)}")
    for e in range(3): a(f"v_mul_f32 {v(vO2+e)}, {v(vO2+e)}, {v(vX)}")
    for e in range(3): a(f"v_cvt_pk_bf16_f32 {v(vO2+e)}, {v(vO2+e)}, {v(vO2+e)}")
    a("s_mov_b64 exec, 0xff")
    for e in range(3):
        a(f"buffer_store_short {v(vO2+e)}, {v(vKk)}, {srd(sOUT)}, {s(sT1)} offen offset:{128*e}")
    if stamp == 3:
        a("s_mov_b64 exec, -1")
        a("s_memrealtime s[66:67]")
        a("s_waitcnt vmcnt(0) lgkmcnt(0)")
        a("s_memrealtime s[68:69]")
        a("s_waitcnt lgkmcnt(0)")
        for e, r in enumerate((sSt, 60, 62, 64, 66, 68, sSpin, sSpin)): a(f"v_mov_b32 {v(24+e)}, {s(r)}")
        a(f"s_lshl_b32 {s(sT0)}, s2, 5")
        a(f"s_add_u32 {s(sT0)}, {s(sT0)}, {STAMP_OFF}")
        a("s_mov_b64 exec, 1")
        a(f"buffer_store_dwordx4 {v4(24)}, {v(vFo)}, {srd(sWS)}, {s(sT0)} offen")
        a(f"buffer_store_dwordx4 {v4(28)}, {v(vFo)}, {srd(sWS)}, {s(sT0)} offen offset:16")
    if stamp in (1, 2):
        a("s_mov_b64 exec, -1")
        if stamp == 2: a("s_memrealtime s[66:67]")
        a("s_waitcnt vmcnt(0)")
        a(f"s_memrealtime {sp(sSt+2)}")
        a("s_waitcnt lgkmcnt(0)")
        if stamp == 2:
            for e, r in enumerate((62, 62, 64, 64, 66, 66, sSt+2, sSt+2)): a(f"v_mov_b32 {v(28+e)}, {s(r)}")
            a(f"s_mul_i32 {s(sT0)}, s2, 1280"); a(f"s_add_u32 {s(sT0)}, {s(sT0)}, {STAMP_OFF + 4096 + 1024 + 32}")
            a("s_mov_b64 exec, 1")
            a(f"buffer_store_dwordx4 {v4(28)}, {v(vFo)}, {srd(sWS)}, {s(sT0)} offen")
            a(f"buffer_store_dwordx4 {v4(32)}, {v(vFo)}, {srd(sWS)}, {s(sT0)} offen offset:16")
            a("s_mov_b64 exec, -1")
        for e in range(4): a(f"v_mov_b32 {v(24+e)}, {s(sSt+e)}")
        a(f"s_lshl_b32 {s(sT0)}, s2, 4")
        a(f"s_add_u32 {s(sT0)}, {s(sT0)}, {STAMP_OFF}")
        a("s_mov_b64 exec, 1")
        a(f"buffer_store_dwordx4 {v4(24)}, {v(vFo)}, {srd(sWS)}, {s(sT0)} offen")
    a.label("L_end")
    a("s_endpgm")
    a.raw('.section .rodata,"a"')
    a.raw(".p2align 6"); a.raw(f".amdhsa_kernel {KN}")
    a.raw(f"  .amdhsa_next_free_vgpr {NV}"); a.raw("  .amdhsa_next_free_sgpr 102"); a.raw(f"  .amdhsa_accum_offset {NV}")
    a.raw("  .amdhsa_group_segment_fixed_size 0"); a.raw("  .amdhsa_kernarg_size 112"); a.raw("  .amdhsa_user_sgpr_count 2")
    a.raw("  .amdhsa_user_sgpr_kernarg_segment_ptr 1"); a.raw("  .amdhsa_system_sgpr_workgroup_id_x 1"); a.raw(".end_amdhsa_kernel")
    t = a.text()
    if safe:
        import re
        out = []
        for l in t.split("\n"):
            out.append(l)
            if l == f"{KN}:": out.append("    s_mov_b32 s100, 0")
            if re.fullmatch(r"L_(c\d+_\d|kw|kr\d\d|vw|vr\d\d|epw|hl|w6|hl2|w7):", l):
                out += ["    s_add_u32 s100, s100, 1", "    s_cmp_gt_u32 s100, 3000000", "    s_cbranch_scc1 L_end"]
        t = "\n".join(out)
    return t

if __name__ == "__main__":
    import argparse
    ap = argparse.ArgumentParser()
    ap.add_argument("-o", default="standalone__kv_cache_quant_pre_rope_vs_post_rope__decode.s")
    args = ap.parse_args()
    open(args.o, "w").write(gen())
```

```python
import sys, math, struct, re
from asmb import Asm

KN = "standalone__kv_cache_quant_pre_rope_vs_post_rope__decode_kernel"
HS = 16384 * 768
KVB = 32 * HS
CSB = 16384 * 384
SCB = 32 * 16384 * 2
WSB = 1610612736
CT_OFF = 32 << 20
ML_OFF = 8 << 20
PW = 768
STAMP_OFF = 1 << 30

def f2u(f): return struct.unpack("<I", struct.pack("<f", f))[0]
HEADER = open("standalone__kv_cache_quant_pre_rope_vs_post_rope__decode.s.ref").read().split("; Override launch")[0]

def gen(stamp=0, Dc=20, Df=0.0, Dmin=15, Dmax=26, Dph0=20, G=250, CP=4, DLY=3, C0=16, CLIP=25, STR=4352, P0=850, SLA=1, SWT=132, SPF=1, CSE=(4,6,9,11), GM=2, EB=1, DE=32, Dcs=20, BARU=6, QF=1, TLW=0, csf='',
        FLG=8, MLAT=70, MLST=31, EPAT=72, hsleep=4, csleep=1, vsleep=0, psleep=1, codepf=3, PFS=3, PFW=2, ctl=1, lprio=3, deph=4,
        stf="sc0 sc1", ldf="sc0 sc1", ofl="", safe=0, stampk=0, dbg=""):
    NPART, NS = 128, 16
    OFS = 48
    TOT = 256 * 12 + OFS
    assert deph == 4
    L_T = 49152
    L_QO = L_T + 16384
    L_FL = L_QO + 12288
    L_W = L_FL + 512
    L_R = L_W + 512
    lds = L_R + 1024
    L_LOG = lds
    if stamp == 2: lds += 2048
    F_D, F_RDY, F_E, F_C, F_G, F_T, F_P, F_Z, F_M, F_K, F_V, F_Q, F_ML = 4, 5, 6, 7, 8, 12, 13, 14, 15, 16, 24, 40, 64
    a = Asm()
    a.raw(HEADER.rstrip("\n"))
    a.raw(f"; @launch grid=(256,1,1) block=(384,1,1) lds={lds}")
    a.raw('.amdgcn_target "amdgcn-amd-amdhsa--gfx950"')
    for l in """Overview (256 workgroups = loader wave + 4 consumer waves + helper wave each; HBM-bandwidth bound):
 * A workgroup owns 128 rows (8 blocks of 16) x 16 heads; a block is 12 KiB, a unit 4 rows (3 KiB, one consumer wave).
 * The loader wave streams cos / sin of the first 64 rows, all K blocks, then all V blocks, by LDS-DMA into a 48 KiB ring;
   landed / consumed counters live in LDS.
 * K pass: logit = ks * sum_d (k[d]-kz) * (qr[d]*cos[d] +- qr[d+-96]*sin[d+-96]) (RoPE moved onto q, v_dot2 on (cos,sin) pairs,
   which stay in VGPRs).  The helper turns the logits into p*vs with the workgroup's true max per head; V pass: acc += p*vs*v.
 * Load balance: 16 workgroups publish when they pass a checkpoint; every helper compares its own progress with their mean and
   sets how many loads its loader keeps in flight (bandwidth share), so all workgroups finish together.  Speed only.
 * Hand-offs through d_ws carry a per-launch epoch (agreed through d_debug[0]) so that stale data is never accepted;
   s_sleep appears only inside polling loops.
 * Every workgroup publishes its (max, sum) per head after the K pass and its weighted V sums at the end; workgroup c < 192
   rescales with the global max and combines 32 output columns (c%6) of head c/6 from the 128 partials.""".split("\n"):
        a.raw("; " + l)
    a.raw(".text"); a.raw(f".globl {KN}"); a.raw(".p2align 8"); a.raw(f".type {KN},@function"); a.raw(f"{KN}:")
    srd = lambda b: f"s[{b}:{b+3}]"
    sp = lambda i: f"s[{i}:{i+1}]"
    v = lambda i: f"v{i}"
    vp = lambda i: f"v[{i}:{i+1}]"
    v4 = lambda i: f"v[{i}:{i+3}]"
    s = lambda i: f"s{i}"
    DPPALL = "row_mask:0xf bank_mask:0xf"
    sGrp = 3
    sK, sC, sS, sWS, sDB, sOUT, sQ, sQC, sQS = 4, 12, 16, 20, 24, 28, 32, 36, 40
    sSt = 44
    sWave, sRow0 = 76, 77
    sT0, sT1, sT2, sT3 = 92, 93, 94, 95
    vLane, vFL = 1, 7
    vX, vY, vZ = 18, 19, 23
    NV = 168
    def mkhi(b, n):
        a(f"s_mov_b32 {s(b+2)}, {n}"); a(f"s_mov_b32 {s(b+3)}, 0x20000")
    def mklo(b, p):
        a(f"s_mov_b64 {sp(b)}, {sp(p)}")
    def mk(b, p, n):
        mklo(b, p); mkhi(b, n)
    def raw_br(t):
        a.lines.append("    " + t)
    CS = [96, 98, 8, 10, 24, 26, 90]
    def cst(i):
        if stamp == 4: a(f"s_memrealtime {sp(CS[i])}")

    a("s_load_dwordx16 s[48:63], s[0:1], 0")
    a("s_load_dwordx8 s[64:71], s[0:1], 64")
    a("s_load_dwordx4 s[72:75], s[0:1], 96")
    if stamp: a(f"s_memrealtime {sp(sSt)}")
    a("s_cmp_ge_u32 s2, 256")
    a("s_cbranch_scc1 L_end")
    a(f"v_lshrrev_b32 {v(vX)}, 6, v0")
    a(f"v_and_b32 {v(vLane)}, 63, v0")
    a(f"v_readfirstlane_b32 {s(sWave)}, {v(vX)}")
    if codepf & 8:
        a(f"s_getpc_b64 {sp(sT0)}")
        a(f"s_bfe_u32 {s(sT2)}, s2, 0x30003")
        a(f"s_lshl3_add_u32 {s(sT2)}, {s(sWave)}, {s(sT2)}")
        a(f"s_lshl_b32 {s(sT2)}, {s(sT2)}, 7")
        a(f"s_add_u32 {s(sT0)}, {s(sT0)}, {s(sT2)}")
        a(f"s_addc_u32 {s(sT1)}, {s(sT1)}, 0")
        for i in ((1, 2, 0) if PFW == 1 else range(6)):
            a(f"s_load_dword s{91 if i else 101}, {sp(sT0)}, {6144*i if PFW == 1 else 6144*(i//2) + 64*(i&1)}")
    a(f"v_cmp_eq_u32 vcc, {F_D}, {v(vLane)}")
    a(f"v_lshlrev_b32 {v(vFL)}, 2, {v(vLane)}")
    a(f"v_add_u32 {v(vFL)}, {L_FL}, {v(vFL)}")
    a(f"v_cndmask_b32 {v(vY)}, 0, {Dph0}, vcc")
    a(f"ds_write_b32 {v(vFL)}, {v(vY)}")
    a(f"s_and_b32 {s(sT0)}, s2, 7"); a(f"s_lshl_b32 {s(sRow0)}, {s(sT0)}, 6")
    a(f"s_and_b32 {s(sT0)}, s2, 0x60"); a(f"s_lshl4_add_u32 {s(sRow0)}, {s(sT0)}, {s(sRow0)}")
    a(f"s_and_b32 {s(sT0)}, s2, 0x10"); a(f"s_lshl1_add_u32 {s(sRow0)}, {s(sT0)}, {s(sRow0)}")
    a(f"s_lshr_b32 {s(sT0)}, s2, 7"); a(f"s_lshl4_add_u32 {s(sRow0)}, {s(sT0)}, {s(sRow0)}")
    a(f"s_bfe_u32 {s(sGrp)}, s2, 0x10003")
    assert deph <= 6
    a(f"s_mul_i32 {s(sT0)}, {s(sGrp)}, {deph*2048}"); a(f"s_add_u32 {s(sRow0)}, {s(sRow0)}, {s(sT0)}")
    a(f"s_cmp_lg_u32 {s(sWave)}, 0")
    a("s_cbranch_scc1 L_other")

    sOff, sHB, sNo, sH, sNeed, sD, sF, sStep, sNm0 = 78, 79, 80, 81, 82, 83, 84, 85, 86
    vL16, vF, vR, vRa = 2, 3, 5, 6
    if lprio: a(f"s_setprio {lprio}")
    if codepf & 4:
        a(f"s_getpc_b64 {sp(sT0)}")
        a.lines.append("L_pc0:")
        a(f"s_bfe_u32 {s(sT2)}, s2, {hex((PFS << 16) | 3)}")
        a(f"v_lshl_add_u32 {v(vX)}, {v(vLane)}, {PFS}, {s(sT2)}")
        a(f"v_lshlrev_b32 {v(vX)}, 7, {v(vX)}")
        a(f"v_cmp_gt_u32 vcc, L_end-L_pc0, {v(vX)}")
        a("s_mov_b64 exec, vcc")
        a(f"global_load_dword {v(vZ)}, {v(vX)}, {sp(sT0)}")
        a("s_mov_b64 exec, -1")
    vC1, vC2 = 4, 8
    KB = 2048 * 384
    a(f"v_lshlrev_b32 {v(vL16)}, 4, {v(vLane)}")
    a(f"v_add_u32 {v(vC2)}, {KB - 1536}, {v(vL16)}")
    a(f"v_cmp_gt_u32 vcc, 32, {v(vLane)}")
    a(f"s_mul_i32 {s(sOff)}, {s(sRow0)}, 384")
    mkhi(sK, 0 if "nocs" in dbg else CSB)
    a(f"v_cndmask_b32 {v(vC1)}, {v(vC2)}, {v(vL16)}, vcc")
    a("s_mov_b32 m0, 0")
    a(f"s_mov_b32 {s(sH)}, 0")
    a(f"v_mov_b32 {v(vRa)}, {L_FL + 4*F_RDY}")
    a(f"v_mov_b32 {v(vR)}, {-Dcs}")
    if TLW:
        a(f"s_mul_i32 {s(sHB)}, {s(sGrp)}, {HS}")
        a(f"s_lshl1_add_u32 {s(sNo)}, {s(sOff)}, {s(sHB)}")
    a("s_waitcnt lgkmcnt(0)")
    mklo(sK, 66)
    if TLW & 1:
        a(f"s_load_dword s91, s[68:69], {s(sOff)}")
        a(f"s_load_dword s101, s[50:51], {s(sNo)}")
    if TLW & 2:
        a("s_mov_b64 exec, 1")
        a(f"v_mov_b32 {v(vX)}, {s(sNo)}")
        a(f"v_mov_b32 {v(vZ)}, {s(sOff)}")
        a(f"global_load_dword {v(vX)}, {v(vX)}, s[50:51] nt")
        a(f"global_load_dword {v(vZ)}, {v(vZ)}, s[68:69]")
        a("s_mov_b64 exec, -1")
    a.label("L_i0")
    for i, va in enumerate((vL16, vC1, vC2)):
        a(f"s_waitcnt vmcnt({Dcs-1})")
        a(f"buffer_load_dwordx4 {v(va)}, {srd(sK)}, {s(sOff)} offen offset:{1024*i} {csf} lds")
        if i == 0:
            a(f"v_add_u32 {v(vR)}, 3, {v(vR)}")
            a(f"s_add_u32 {s(sH)}, {s(sH)}, 1")
        if i == 1:
            a(f"s_and_b32 {s(sT0)}, {s(sH)}, 3")
            a(f"s_cselect_b32 {s(sT0)}, 0, -6144")
            a(f"s_cmp_eq_u32 {s(sH)}, 8")
            a(f"s_cselect_b32 {s(sT1)}, {2*KB}, 0")
            a(f"s_add_u32 {s(sT0)}, {s(sT0)}, {s(sT1)}")
            a(f"s_bitcmp1_b32 {s(sH)}, 2")
    a(f"ds_write_b32 {v(vRa)}, {v(vR)}")
    a(f"s_cselect_b64 {sp(sK)}, s[68:69], s[66:67]")
    a("s_addk_i32 m0, 3072")
    a(f"s_addk_i32 {s(sT0)}, 1536")
    a(f"s_add_u32 {s(sOff)}, {s(sOff)}, {s(sT0)}")
    a(f"s_cmp_lg_u32 {s(sH)}, {BARU}")
    a("s_cbranch_scc1 L_i1")
    a("s_barrier")
    a.label("L_i1")
    a(f"s_cmp_lt_u32 {s(sH)}, 16")
    a("s_cbranch_scc1 L_i0")
    a(f"ds_read_b32 {v(vF)}, {v(vFL)}")
    a(f"s_mul_i32 {s(sHB)}, {s(sGrp)}, {HS}")
    mk(sK, 50, KVB)
    a("s_mov_b32 m0, 0")
    a(f"s_movk_i32 {s(sStep)}, 4096")
    def next_ops():
        return [f"s_and_b32 {s(sT0)}, {s(sH)}, 7",
                f"s_lshl_b32 {s(sT0)}, {s(sT0)}, 11",
                f"s_add_u32 {s(sT0)}, {s(sT0)}, {s(sRow0)}",
                f"s_and_b32 {s(sT0)}, {s(sT0)}, 16383",
                f"s_mul_i32 {s(sNo)}, {s(sT0)}, 768",
                f"s_bfe_u32 {s(sT0)}, {s(sH)}, 0x40003",
                f"s_mul_i32 {s(sT0)}, {s(sT0)}, {2*HS}",
                f"s_add_u32 {s(sNo)}, {s(sNo)}, {s(sHB)}",
                f"s_add_u32 {s(sNo)}, {s(sNo)}, {s(sT0)}" if "l2" not in dbg else f"s_and_b32 {s(sNo)}, {s(sNo)}, 0x1fffff",
                f"s_and_b32 {s(sNm0)}, {s(sH)}, 3",
                f"s_mul_i32 {s(sNm0)}, {s(sNm0)}, 12288"]
    a(f"s_mov_b32 {s(sH)}, 0")
    a(f"s_mul_i32 {s(sOff)}, {s(sRow0)}, 768")
    a(f"s_add_u32 {s(sOff)}, {s(sOff)}, {s(sHB)}")
    a(f"s_mov_b32 {s(sNeed)}, 1")
    a("s_waitcnt lgkmcnt(0)")
    a(f"v_readlane_b32 {s(sF)}, {v(vF)}, 0")
    if stamp == 2:
        a(f"v_mov_b32 v10, {L_LOG}")
        a(f"s_memrealtime {sp(sSt+2)}")
    DS = list(range(Dmin, Dmax+1)) + ([DE] if EB else [])
    assert max(DS) <= 36
    NT = "" if "l2" in dbg else "nt"
    retry = []
    def variant(d):
        a.label(f"L_D{d}")
        a(f"s_mul_i32 {s(sT0)}, {s(sH)}, 12")
        a(f"s_add_u32 {s(sT0)}, {s(sT0)}, {OFS - d}")
        a(f"v_mov_b32 {v(vR)}, {s(sT0)}")
        a(f"; one block (4 units) with {d} loads in flight"); a.label(f"L_B{d}", flush=False)
        fill = [f"s_add_u32 {s(sH)}, {s(sH)}, 1"] + next_ops()
        for n in range(12):
            j = n // 3
            if n % 3 == 0:
                lb = f"L_B{d}_{j}"
                a.lines.append(f"{lb}:")
                a(f"s_cmp_lt_i32 {s(sF)}, {s(sNeed)}")
                raw_br(f"s_cbranch_scc1 {lb}w")
                retry.append((lb, j))
            a(f"s_waitcnt vmcnt({d-1})")
            a(f"buffer_load_dwordx4 {v(vL16)}, {srd(sK)}, {s(sOff)} offen offset:{1024*(n%4)} {NT} lds")
            if n % 3 == 0:
                a(f"v_add_u32 {v(vR)}, 3, {v(vR)}")
                if n == 9: a(f"v_readlane_b32 {s(sD)}, {v(vF)}, {F_D}")
            if n % 3 == 1:
                a(f"v_readlane_b32 {s(sF)}, {v(vF)}, {(j+1)&3}")
                a(f"ds_read_b32 {v(vF)}, {v(vFL)}")
            if n % 3 == 2:
                a(f"ds_write_b32 {v(vRa)}, {v(vR)}")
            if n in (3, 7):
                a(f"s_add_u32 m0, m0, {s(sStep)}")
                a(f"s_add_u32 {s(sOff)}, {s(sOff)}, {s(sStep)}")
            elif n < 10:
                k = 1 if n % 3 == 1 else 2
                for o in fill[:k]: a(o)
                fill = fill[k:]
            if n == 10:
                assert not fill
                a(f"s_add_u32 {s(sNeed)}, {s(sNeed)}, 1")
                if EB and d != DE:
                    a(f"s_cmp_ge_u32 {s(sH)}, {256-EB}")
                    a(f"s_cselect_b32 {s(sD)}, -1, {s(sD)}")
                else:
                    a(f"s_cmp_eq_u32 {s(sH)}, 256")
                    a(f"s_cselect_b32 {s(sD)}, -1, {DE if EB else s(sD)}")
                a(f"s_cmp_ge_u32 {s(sH)}, 128")
        a(f"s_cselect_b64 {sp(sK)}, s[56:57], s[50:51]")
        a(f"s_mov_b32 m0, {s(sNm0)}")
        a(f"s_mov_b32 {s(sOff)}, {s(sNo)}")
        if stamp == 2:
            a(f"v_mov_b32 v8, {s(sSt+2)}"); a(f"v_mov_b32 v9, {d}")
            a("ds_write_b64 v10, v[8:9]"); a("v_add_u32 v10, 8, v10")
            a(f"s_memrealtime {sp(sSt+2)}")
        a(f"s_cmp_eq_u32 {s(sD)}, {d}")
        raw_br(f"s_cbranch_scc1 L_B{d}")
    variant(Dph0)
    a.label("L_disp")
    for d in sorted(range(Dmin+1, Dmax), key=lambda d: abs(d - Dc - 0.25)):
        a(f"s_cmp_eq_u32 {s(sD)}, {d}"); a(f"s_cbranch_scc1 L_D{d}")
    a(f"s_cmp_eq_u32 {s(sH)}, 256")
    a("s_cbranch_scc1 L_drain")
    if EB:
        a(f"s_cmp_ge_u32 {s(sH)}, {256-EB}")
        a(f"s_cbranch_scc1 L_D{DE}")
    a(f"s_cmp_ge_i32 {s(sD)}, {Dmax}")
    a(f"s_cbranch_scc1 L_D{Dmax}")
    a(f"s_branch L_D{Dmin}")
    for d in sorted([d for d in DS if d != Dph0], key=lambda d: abs(d - Dc)):
        if EB and d == DE: continue
        variant(d)
        if EB:
            a(f"s_cmp_eq_u32 {s(sD)}, -1"); a(f"s_cbranch_scc1 L_D{DE}")
        for d2 in (d-1, d+1) if d > Dc else (d+1, d-1):
            if d2 in DS:
                a(f"s_cmp_eq_u32 {s(sD)}, {d2}"); a(f"s_cbranch_scc1 L_D{d2}")
        a("s_branch L_disp")
    for lb, j in retry + ([(f"L_B{DE}_{j}", j) for j in range(4)] if EB else []):
        a.label(f"{lb}w")
        a(f"ds_read_b32 {v(vF)}, {v(vFL)}")
        a("s_waitcnt lgkmcnt(0)")
        a(f"v_readlane_b32 {s(sF)}, {v(vF)}, {j}")
        a("s_nop 0")
        raw_br(f"s_branch {lb}"); a.hist = []
    a.label("L_tail")
    if EB: variant(DE)
    a("; all loads issued: publish the last arrivals"); a.label("L_drain")
    for r in range((max(DS) - 2) // 3 * 3, -1, -3):
        a(f"v_mov_b32 {v(vX)}, {TOT - r}")
        a(f"s_waitcnt vmcnt({r})")
        a(f"ds_write_b32 {v(vRa)}, {v(vX)}")
    if stamp == 2:
        a(f"v_lshlrev_b32 {v(vX)}, 4, {v(vLane)}")
        a(f"v_add_u32 {v(vX)}, {L_LOG}, {v(vX)}")
        a(f"ds_read_b32 v8, {v(vX)}"); a(f"ds_read_b32 v9, {v(vX)} offset:1024")
        a(f"ds_read_b32 v10, {v(vX)} offset:4"); a(f"ds_read_b32 v11, {v(vX)} offset:1028")
        a("v_mov_b32 v12, 0")
        a("s_waitcnt lgkmcnt(0)")
        a(f"v_writelane_b32 v12, {s(sSt+2)}, 1")
        a(f"s_memrealtime {sp(sSt+2)}")
        a("s_getreg_b32 s34, hwreg(HW_REG_XCC_ID)")
        a("s_getreg_b32 s35, hwreg(HW_REG_HW_ID)")
        mk(sWS, 74, WSB)
        a("s_waitcnt lgkmcnt(0)")
        a(f"v_writelane_b32 v12, {s(sSt)}, 0"); a(f"v_writelane_b32 v12, {s(sSt+2)}, 2"); a("v_writelane_b32 v12, s34, 4"); a("v_writelane_b32 v12, s35, 5")
        a(f"s_mul_i32 {s(sT0)}, s2, 1280"); a(f"s_add_u32 {s(sT0)}, {s(sT0)}, {STAMP_OFF + 4096}"); a(f"v_lshlrev_b32 {v(vX)}, 2, {v(vLane)}")
        for e in range(5):
            if e == 4: a("s_mov_b64 exec, 0xff")
            a(f"buffer_store_dword v{8+e}, {v(vX)}, {srd(sWS)}, {s(sT0)} offen offset:{256*e}")
    a("s_waitcnt lgkmcnt(0)")
    a("s_endpgm")

    vRd, vTa, vTw, vDn, vDc, vOne, vQl = 2, 3, 4, 5, 6, 8, 9
    vS, vKz, vAK, vBK = 10, 12, 14, 16
    vC, vS1, vCnt = 20, 21, 22
    vB, vW, vQ, vBank = 24, 36, 48, 72
    vAcc = 72
    sW, sNd, sRdy, sPh, sCo, sSel0, sSel1, sHi, sLs, sRc = 78, 79, 80, 81, 82, 83, 84, 86, 88, 89
    a.label("L_other")
    cst(0)
    a(f"s_cmp_eq_u32 {s(sWave)}, 5")
    a("s_cbranch_scc1 L_helper")
    qr = vB
    vQo0, vQo1, vSg = qr+20, qr+21, qr+22
    def q_addr():
        a(f"v_lshlrev_b32 {v(vQo0)}, 3, {v(vLane)}")
        a(f"v_cmp_gt_u32 vcc, 24, {v(vLane)}")
        a(f"v_mov_b32 {v(vZ)}, 0xffffff40")
        a(f"v_mov_b32 {v(vX)}, 192")
        a(f"v_cndmask_b32 {v(vZ)}, {v(vZ)}, {v(vX)}, vcc")
        a(f"v_add_u32 {v(vQo1)}, {v(vQo0)}, {v(vZ)}")
        a(f"v_mov_b32 {v(vX)}, 0x80008000")
        a(f"v_cndmask_b32 {v(vSg)}, 0, {v(vX)}, vcc")
    a(f"s_sub_u32 {s(sW)}, {s(sWave)}, 1")
    q_addr()
    a(f"v_lshrrev_b32 {v(vY)}, 4, {v(vLane)}")
    a(f"v_and_b32 {v(vZ)}, 15, {v(vLane)}")
    a(f"v_mul_u32_u24 {v(vC)}, 384, {v(vY)}")
    a(f"v_lshl_add_u32 {v(vC)}, {v(vZ)}, 3, {v(vC)}")
    a(f"v_cmp_lt_u32 {sp(sHi)}, 7, {v(vZ)}")
    a(f"v_mov_b32 {v(vS1)}, -64")
    a(f"v_mov_b32 {v(vX)}, 320")
    a(f"v_cndmask_b32 {v(vS1)}, {v(vX)}, {v(vS1)}, {sp(sHi)}")
    a(f"v_add_u32 {v(vS1)}, {v(vC)}, {v(vS1)}")
    a(f"s_lshl2_add_u32 {s(sT3)}, {s(sW)}, {s(sGrp)}")
    a(f"s_mul_i32 {s(sT3)}, {s(sT3)}, 384")
    a(f"s_lshl2_add_u32 {s(sRc)}, {s(sW)}, {s(sRow0)}")
    a(f"s_xor_b32 {s(sRc)}, {s(sRc)}, 8192")
    def qcs_loads():
        a(f"buffer_load_dwordx2 {vp(qr+16)}, {v(vQo0)}, {srd(sQC)}, 0 offen")
        a(f"buffer_load_dwordx2 {vp(qr+18)}, {v(vQo0)}, {srd(sQS)}, 0 offen")
    def q_loads(so, qr=qr):
        a(f"buffer_load_dwordx2 {vp(qr+0)}, {v(vQo0)}, {srd(sQ)}, {s(so)} offen")
        a(f"buffer_load_dwordx2 {vp(qr+2)}, {v(vQo1)}, {srd(sQ)}, {s(so)} offen")
        a(f"buffer_load_dwordx2 {vp(qr+4)}, {v(vQo0)}, {srd(sQ)}, {s(so)} offen offset:768")
        a(f"buffer_load_dwordx2 {vp(qr+6)}, {v(vQo1)}, {srd(sQ)}, {s(so)} offen offset:768")
    mkhi(sQ, 12288); mkhi(sQC, 384); mkhi(sQS, 384)
    mkhi(sC, 0 if "nocs" in dbg else CSB); mkhi(sS, 0 if "nocs" in dbg else CSB)
    a("s_waitcnt lgkmcnt(0)")
    cst(1)
    mklo(sQ, 48); mklo(sQC, 62); mklo(sQS, 64)
    q_loads(sT3); qcs_loads()
    mklo(sC, 66); mklo(sS, 68)
    def issue_cs(k):
        R = vBank + 12*k
        a(f"s_mul_i32 {s(sCo)}, {s(sRc)}, 384")
        a(f"s_add_u32 {s(sRc)}, {s(sRc)}, 2048")
        a(f"s_and_b32 {s(sRc)}, {s(sRc)}, 16383")
        for i in range(3):
            a(f"buffer_load_dwordx2 {vp(R+4*i)}, {v(vC)}, {srd(sC)}, {s(sCo)} offen offset:{128*i}")
            if i == 1:
                a(f"buffer_load_dwordx2 {vp(R+4*i+2)}, {v(vS1)}, {srd(sS)}, {s(sCo)} offen")
            else:
                a(f"buffer_load_dwordx2 {vp(R+4*i+2)}, {v(vC)}, {srd(sS)}, {s(sCo)} offen offset:{192 if i == 0 else 64}")
    def cs_at(pos):
        for i in range(4):
            if CSE[i] == pos: issue_cs(4 + i)
    assert list(CSE) == sorted(CSE) and QF == 1
    cs_at(0)
    cst(2)
    a("s_barrier")
    cs_at(1)
    a(f"s_mov_b32 {s(sSel0)}, 0x05040100")
    a(f"s_mov_b32 {s(sSel1)}, 0x07060302")
    a(f"s_mul_i32 {s(sT0)}, {s(sW)}, 3072")
    a(f"v_lshl_add_u32 {v(vRd)}, {v(vC)}, 1, {s(sT0)}")
    a(f"v_add_u32 {v(vKz)}, {s(sT0)}, {v(vC)}")
    a(f"v_add_u32 {v(vKz+1)}, {s(sT0)}, {v(vS1)}")
    a(f"s_lshl_b32 {s(sT0)}, {s(sW)}, 5")
    a(f"s_add_u32 {s(sT0)}, {s(sT0)}, {L_T}")
    a(f"v_lshl_add_u32 {v(vTa)}, {v(vY)}, 3, {s(sT0)}")
    a(f"v_lshrrev_b32 {v(vX)}, 3, {v(vZ)}")
    a(f"v_lshl_add_u32 {v(vTw)}, {v(vX)}, 7, {v(vTa)}")
    a(f"v_lshlrev_b32 {v(vQl)}, 4, {v(vZ)}")
    a(f"v_add_u32 {v(vQl)}, {L_QO}, {v(vQl)}")
    a(f"s_lshl2_add_u32 {s(sT0)}, {s(sW)}, {L_FL}")
    a(f"v_mov_b32 {v(vDn)}, {s(sT0)}")
    a(f"v_mov_b32 {v(vDc)}, 0")
    a(f"v_mov_b32 {v(vOne)}, 1")
    a(f"s_mul_i32 {s(sNd)}, {s(sW)}, 3")
    a(f"s_sub_u32 {s(sNd)}, {s(sNd)}, 9")
    a(f"s_mov_b32 {s(sRdy)}, 0")
    a(f"s_mov_b32 {s(sPh)}, 0")
    a(f"s_mul_i32 {s(sT0)}, {s(sW)}, 1536")
    a(f"s_add_u32 {s(sT0)}, {s(sT0)}, {L_QO}")
    a(f"v_lshl_add_u32 {v(vAK)}, {v(vQo0)}, 1, {s(sT0)}")
    a(f"v_lshl_add_u32 {v(vBK)}, {v(vQo1)}, 1, {s(sT0)}")
    def unpack(dst, src):
        a(f"v_lshlrev_b32 {v(dst)}, 16, {v(src)}"); a(f"v_and_b32 {v(dst+1)}, 0xffff0000, {v(src)}")
        a(f"v_lshlrev_b32 {v(dst+2)}, 16, {v(src+1)}"); a(f"v_and_b32 {v(dst+3)}, 0xffff0000, {v(src+1)}")
    t_ = vQ
    cF, sF_ = t_, t_+4
    def qprep_cs():
        a(f"v_xor_b32 {v(qr+18)}, {v(qr+18)}, {v(vSg)}"); a(f"v_xor_b32 {v(qr+19)}, {v(qr+19)}, {v(vSg)}")
        unpack(cF, qr+16); unpack(sF_, qr+18)
        a(f"v_and_b32 {v(vSg)}, 0x80000000, {v(vSg)}")
    def qprep_pair(vL0, vL1):
        a("s_mov_b32 exec_hi, 0xffff")
        for X in range(2):
            aF, bF = t_+8, t_+12
            rr = t_+16 + 4*X
            unpack(aF, qr+4*X); unpack(bF, qr+4*X+2)
            for e in range(0, 4, 2):
                a(f"v_pk_mul_f32 {vp(aF+e)}, {vp(aF+e)}, {vp(cF+e)}"); a(f"v_pk_mul_f32 {vp(bF+e)}, {vp(bF+e)}, {vp(sF_+e)}")
            for e in range(4):
                a(f"v_cvt_pk_bf16_f32 {v(aF+e)}, {v(aF+e)}, {v(bF+e)}")
            for e in range(4):
                a(f"v_and_b32 {v(bF+e)}, 0xffff0000, {v(aF+e)}"); a(f"v_lshlrev_b32 {v(aF+e)}, 16, {v(aF+e)}")
            for e in range(0, 4, 2):
                a(f"v_pk_add_f32 {vp(aF+e)}, {vp(aF+e)}, {vp(bF+e)}")
            for e in range(4):
                a(f"v_cvt_pk_bf16_f32 {v(rr+e)}, {v(aF+e)}, {v(aF+e)}")
            for e in range(4):
                a(f"v_xor_b32 {v(rr+e)}, {v(rr+e)}, {v(vSg)}")
            for e in range(4):
                a(f"ds_write_b16 {v(vL0)}, {v(rr+e)} offset:{768*X+4*e}")
                a(f"ds_write_b16_d16_hi {v(vL1)}, {v(rr+e)} offset:{768*X+4*e+2}")
        a("s_mov_b32 exec_hi, -1")
    CEXP = (192.0 ** -0.5) * math.log2(math.e)
    def wait_ready(lbl, sl):
        a(f"s_add_u32 {s(sNd)}, {s(sNd)}, 12")
        a(f"s_cmp_ge_i32 {s(sRdy)}, {s(sNd)}")
        raw_br(f"s_cbranch_scc1 {lbl}g")
        a.lines.append(f"{lbl}:")
        a(f"ds_read_b32 {v(vY)}, {v(vFL)}")
        if sl: a(f"s_sleep {sl}")
        a("s_waitcnt lgkmcnt(0)")
        a(f"v_readlane_b32 {s(sRdy)}, {v(vY)}, {F_RDY}")
        a(f"s_cmp_lt_i32 {s(sRdy)}, {s(sNd)}")
        raw_br(f"s_cbranch_scc1 {lbl}")
        a.lines.append(f"{lbl}g:")
    def fetch(slot, dS, toff):
        a(f"ds_read_b32 {v(dS)}, {v(vTa)} offset:{toff}")
        for i in range(3):
            a(f"ds_read_b128 {v4(vB+4*i)}, {v(vRd)} offset:{12288*slot + 256*i}")
        a(f"v_add_u32 {v(vDc)}, 1, {v(vDc)}")
        a(f"ds_write_b32 {v(vDn)}, {v(vDc)}")
    def lds_inc():
        a("s_mov_b64 exec, 1")
        a(f"ds_add_u32 {v(vCnt)}, {v(vOne)}")
        a("s_mov_b64 exec, -1")
    def qwork():
        cst(3)
        a(f"s_waitcnt vmcnt({6*sum(c < 2 for c in CSE)})")
        cst(4)
        qprep_cs(); qprep_pair(vAK, vBK)
        a(f"ds_write_b32 {v(vDn)}, {v(vOne)} offset:{4*F_Q}")
        cs_at(2)
        cst(5)
    for b in range(4):
        if b == QF - 1: qwork()
        wait_ready(f"L_cr{b}", csleep)
        for u in range(2):
            R = vBank + 12*(b//2*2 + u) + 2*(b & 1)
            for i in range(3):
                if b & 1:
                    a(f"ds_read_b64 {vp(R+4*i)}, {v(vKz+1 if i == 1 else vKz)} offset:{12288*b + 1536*u + (192, 0, 64)[i]}")
                else:
                    a(f"ds_read_b64 {vp(R+4*i)}, {v(vKz)} offset:{12288*b + 1536*u + 128*i}")
        a(f"v_add_u32 {v(vDc)}, 1, {v(vDc)}")
        a(f"ds_write_b32 {v(vDn)}, {v(vDc)}")
        cs_at(3 + b)
    if QF > 4: qwork()
    a("; ---- K pass: one head per iteration ----"); a.label("L_kph")
    a(f"s_lshr_b32 {s(sT2)}, {s(sPh)}, 1")
    a(f"s_add_u32 {s(sLs)}, {s(sT2)}, {F_Q}")
    a(f"s_lshl2_add_u32 {s(sT0)}, {s(sT2)}, {L_FL + 4*F_K}")
    a(f"v_mov_b32 {v(vCnt)}, {s(sT0)}")
    a.label("L_kw")
    a(f"ds_read_b32 {v(vY)}, {v(vFL)}")
    for i in range(3):
        a(f"ds_read_b128 {v4(vQ+4*i)}, {v(vQl)} offset:{256*i}")
    a("s_waitcnt lgkmcnt(0)")
    a(f"v_readlane_b32 {s(sT0)}, {v(vY)}, {s(sLs)}")
    a(f"v_readlane_b32 {s(sT1)}, {v(vY)}, {F_T}")
    a(f"s_cmp_eq_u32 {s(sT0)}, 0")
    a("s_cbranch_scc1 L_kw")
    a(f"s_cmp_le_u32 {s(sT1)}, {s(sT2)}")
    a("s_cbranch_scc1 L_kw")
    a(f"v_add_u32 {v(vQl)}, 768, {v(vQl)}")
    PM = (0, 2, 1, 3)
    for k in range(8):
        R = vBank + 12*k
        X = k & 1
        a(f"s_cmp_lg_u32 {s(sPh)}, 0")
        a(f"s_cbranch_scc1 L_ncs{k}")
        if k == 0 and stampk == 0: cst(6)
        if k >= 4: a(f"s_waitcnt vmcnt({6*sum(CSE[i] < 8 + k for i in range(k - 3, 4))})")
        assert k < 4 or CSE[k-4] < 8 + k
        cs_at(8 + k)
        if k == stampk - 1: cst(6)
        for i in range(3):
            for h in range(2):
                c0, s0 = R+4*i+h, R+4*i+2+h
                a(f"v_perm_b32 {v(vW+2*i+h)}, {v(s0)}, {v(c0)}, {s(sSel0)}")
                a(f"v_perm_b32 {v(s0)}, {v(s0)}, {v(c0)}, {s(sSel1)}")
        for i in range(3):
            a(f"v_mov_b64 {vp(R+4*i)}, {vp(vW+2*i)}")
        a.label(f"L_ncs{k}")
        acc = vAK if X == 0 else vBK
        for i in range(3):
            for e in range(4):
                a(f"v_dot2_f32_bf16 {v(vW+4*i+e)}, {v(R+4*i+PM[e])}, {v(vQ+4*i+e)}, 0")
        wait_ready(f"L_kr{k}", csleep)
        fetch(k & 3, vS+X, 128*k)
        for i in range(3):
            B = vB + 4*i
            a(f"s_waitcnt lgkmcnt({3-i})")
            if i == 0: a(f"v_and_b32 {v(vKz)}, 0xffff0000, {v(vS+X)}")
            for e in range(4):
                a(f"v_cvt_f32_i32 {v(B+e)}, {v(B+e)}")
            sel = "op_sel:[0,0] op_sel_hi:[1,0] neg_lo:[0,1] neg_hi:[0,1]"
            a(f"v_pk_add_f32 {vp(B)}, {vp(B)}, {vp(vKz)} {sel}")
            a(f"v_pk_add_f32 {vp(B+2)}, {vp(B+2)}, {vp(vKz)} {sel}")
            if i == 0:
                a(f"v_pk_mul_f32 {vp(acc)}, {vp(B)}, {vp(vW)}")
            else:
                a(f"v_pk_fma_f32 {vp(acc)}, {vp(B)}, {vp(vW+4*i)}, {vp(acc)}")
            a(f"v_pk_fma_f32 {vp(acc)}, {vp(B+2)}, {vp(vW+4*i+2)}, {vp(acc)}")
        a(f"v_add_f32 {v(acc)}, {v(acc)}, {v(acc+1)}")
        if X == 1:
            a(f"v_cndmask_b32 {v(vZ)}, {v(vS)}, {v(vS+1)}, {sp(sHi)}")
            a(f"v_lshlrev_b32 {v(vZ)}, 16, {v(vZ)}")
        a(f"v_add_f32_dpp {v(vX)}, {v(acc)}, {v(acc)} row_ror:8 row_mask:0xf bank_mask:{'0x3' if X == 0 else '0xc'}")
        if X == 1:
            a(f"v_mul_f32 {v(vZ)}, {hex(f2u(CEXP))}, {v(vZ)}")
            a(f"v_add_f32_dpp {v(vX)}, {v(vX)}, {v(vX)} row_half_mirror {DPPALL}")
            a(f"v_add_f32_dpp {v(vX)}, {v(vX)}, {v(vX)} quad_perm:[2,3,0,1] {DPPALL}")
            a(f"v_add_f32_dpp {v(vX)}, {v(vX)}, {v(vX)} quad_perm:[1,0,3,2] {DPPALL}")
            a(f"v_mul_f32 {v(vX)}, {v(vZ)}, {v(vX)}")
            a(f"ds_write_b32 {v(vTw)}, {v(vX)} offset:{128*(k-1)}")
    lds_inc()
    a(f"v_add_u32 {v(vTa)}, 1024, {v(vTa)}")
    a(f"v_add_u32 {v(vTw)}, 1024, {v(vTw)}")
    a(f"s_add_u32 {s(sPh)}, {s(sPh)}, 1")
    a(f"s_cmp_lt_u32 {s(sPh)}, 16")
    a("s_cbranch_scc1 L_kph")
    a(f"v_subrev_u32 {v(vTa)}, 16384, {v(vTa)}")
    a(f"s_mul_i32 {s(sT0)}, {s(sW)}, 768")
    a(f"s_add_u32 {s(sT0)}, {s(sT0)}, {L_QO}")
    a(f"v_and_b32 {v(vX)}, 15, {v(vLane)}")
    a(f"v_lshl_add_u32 {v(vQl)}, {v(vX)}, 4, {s(sT0)}")
    a(f"v_lshrrev_b32 {v(vX)}, 4, {v(vLane)}")
    a(f"v_lshl_add_u32 {v(vQl)}, {v(vX)}, 2, {v(vQl)}")
    a(f"v_mov_b32 {v(vCnt)}, {L_FL + 4*F_V}")
    sEc, sCl = 4, 32
    vFF, vO2, vWc, vFl, vKo, vWa, vDa = 48, 14, 64, 68, 69, 70, 71
    mk(sWS, 74, WSB); mk(sOUT, 70, 12288)
    a(f"s_mul_i32 {s(sT0)}, s2, 43691")
    a(f"s_lshr_b32 {s(sT0)}, {s(sT0)}, 18")
    a(f"s_mul_i32 {s(sT1)}, {s(sT0)}, 6")
    a(f"s_sub_u32 {s(sT1)}, s2, {s(sT1)}")
    a(f"s_lshl2_add_u32 {s(sT2)}, {s(sT0)}, {s(sW)}")
    a(f"s_mul_i32 {s(sCl)}, {s(sT2)}, {32*PW}")
    a(f"s_lshl_b32 {s(sT2)}, {s(sT1)}, 7")
    a(f"s_add_u32 {s(sCl)}, {s(sCl)}, {s(sT2)}")
    for i in range(1, 4): a(f"s_add_u32 {s(sCl+i)}, {s(sCl+i-1)}, {8*PW}")
    a(f"s_lshl_b32 {s(sCl+4)}, s2, 6")
    a(f"s_lshr_b32 {s(sCl+5)}, {s(sT0)}, 1")
    a(f"s_add_u32 {s(sCl+5)}, {s(sCl+5)}, {GM}")
    a(f"s_min_u32 {s(sCl+5)}, {s(sCl+5)}, 16")
    a(f"v_lshrrev_b32 {v(vY)}, 3, {v(vLane)}")
    a(f"v_and_b32 {v(vKo)}, 7, {v(vLane)}")
    a(f"v_mul_u32_u24 {v(vFl)}, {PW}, {v(vY)}")
    a(f"v_lshl_add_u32 {v(vFl)}, {v(vKo)}, 4, {v(vFl)}")
    a(f"v_lshlrev_b32 {v(vKo)}, 3, {v(vKo)}")
    a(f"v_lshl_add_u32 {v(vKo)}, {v(vX)}, 1, {v(vKo)}")
    a(f"s_lshl4_add_u32 {s(sT0)}, {s(sW)}, {L_W}")
    a(f"v_lshl_add_u32 {v(vWa)}, {v(vY)}, 6, {s(sT0)}")
    a(f"s_lshl_b32 {s(sT0)}, {s(sW)}, 8")
    a(f"s_add_u32 {s(sT0)}, {s(sT0)}, {L_R - L_FL}")
    a(f"v_add_u32 {v(vTw)}, {s(sT0)}, {v(vFL)}")
    a(f"s_mov_b32 {s(sPh)}, 0")
    a("; ---- V pass: one head per iteration ----"); a.label("L_vph")
    for i in range(0, 12, 2): a(f"v_mov_b64 {vp(vAcc+i)}, 0")
    a(f"s_and_b32 {s(sT0)}, {s(sPh)}, 3")
    a(f"s_mul_i32 {s(sT0)}, {s(sT0)}, 3072")
    a(f"v_add_u32 {v(vDa)}, {s(sT0)}, {v(vQl)}")
    a(f"s_mov_b32 {s(sLs)}, 0")
    a.label("L_vw")
    a(f"ds_read_b32 {v(vY)}, {v(vFL)}")
    a("s_waitcnt lgkmcnt(0)")
    a(f"v_readlane_b32 {s(sT0)}, {v(vY)}, {F_M}")
    a(f"v_readlane_b32 {s(sT1)}, {v(vY)}, {F_P}")
    a(f"s_add_u32 {s(sT0)}, {s(sT0)}, 4")
    a(f"s_min_u32 {s(sT1)}, {s(sT1)}, {s(sT0)}")
    a(f"s_cmp_le_u32 {s(sT1)}, {s(sPh)}")
    a("s_cbranch_scc1 L_vw")
    a(f"s_cmp_lg_u32 {s(sPh)}, 15")
    a("s_cbranch_scc1 L_vit")
    a(f"v_readlane_b32 {s(sEc)}, {v(vY)}, {F_E}")
    a("s_cmp_ge_u32 s2, 192")
    a("s_cbranch_scc1 L_vit")
    a(f"s_cmp_eq_u32 {s(sEc)}, 0")
    a("s_cbranch_scc1 L_vw")
    a(f"ds_read_b128 {v4(vWc)}, {v(vWa)}")
    a(f"s_lshr_b32 {s(sEc+1)}, {s(sEc)}, 8")
    a(f"s_lshr_b32 {s(sEc+2)}, {s(sEc)}, 16")
    a(f"s_lshr_b32 {s(sEc+3)}, {s(sEc)}, 24")
    a.label("L_vit")
    for k in range(4):
        wait_ready(f"L_vr{k}", vsleep)
        fetch(k, vS, 128*k)
        if k == 3:
            a(f"v_add_u32 {v(vTa)}, 512, {v(vTa)}")
            a(f"s_add_u32 {s(sLs)}, {s(sLs)}, 1")
            a(f"s_cmp_lt_u32 {s(sLs)}, 2")
        for i in range(3):
            B = vB + 4*i
            acc = vAcc + 4*i
            a(f"s_waitcnt lgkmcnt({3-i})")
            for e in range(4):
                a(f"v_cvt_f32_i32 {v(B+e)}, {v(B+e)}")
            sel = "op_sel:[0,0,0] op_sel_hi:[1,0,1]"
            a(f"v_pk_fma_f32 {vp(acc)}, {vp(B)}, {vp(vS)}, {vp(acc)} {sel}")
            a(f"v_pk_fma_f32 {vp(acc+2)}, {vp(B+2)}, {vp(vS)}, {vp(acc+2)} {sel}")
    raw_br("s_cbranch_scc1 L_vit")
    R3 = [vAcc + 4*i for i in range(3)]
    for r_ in R3:
        a(f"v_permlane32_swap_b32 {v(r_)}, {v(r_+2)}")
        a(f"v_permlane32_swap_b32 {v(r_+1)}, {v(r_+3)}")
    for r_ in R3: a(f"v_pk_add_f32 {vp(r_)}, {vp(r_)}, {vp(r_+2)}")
    for r_ in R3: a(f"v_permlane16_swap_b32 {v(r_)}, {v(r_+1)}")
    for i, r_ in enumerate(R3): a(f"v_add_f32 {v(vW+i)}, {v(r_)}, {v(r_+1)}")
    a(f"ds_write2st64_b32 {v(vDa)}, {v(vW)}, {v(vW+1)} offset0:0 offset1:1")
    a(f"ds_write_b32 {v(vDa)}, {v(vW+2)} offset:512")
    lds_inc()
    a(f"v_add_u32 {v(vCnt)}, 4, {v(vCnt)}")
    a(f"s_add_u32 {s(sPh)}, {s(sPh)}, 1")
    a(f"s_cmp_lt_u32 {s(sPh)}, 16")
    a("s_cbranch_scc1 L_vph")
    a("s_cmp_ge_u32 s2, 192")
    a("s_cbranch_scc1 L_cend")
    a("; the other workgroups' partials are not there before this one's own have been written"); a.label("L_gw")
    a(f"ds_read_b32 {v(vY)}, {v(vFL)}")
    a("s_waitcnt lgkmcnt(0)")
    a(f"v_readlane_b32 {s(sT0)}, {v(vY)}, {F_G}")
    a(f"s_cmp_lt_u32 {s(sT0)}, {s(sCl+5)}")
    a("s_cbranch_scc1 L_gw")
    a("; gather 32 of the 128 partial lines; lanes whose lines do not all carry this launch's tag try again"); a.label("L_try")
    if stamp == 3: a("s_memrealtime s[60:61]")
    for i in range(4):
        a(f"buffer_load_dwordx4 {v4(vFF+4*i)}, {v(vFl)}, {srd(sWS)}, {s(sCl+i)} offen {ldf}")
    for i in range(4):
        a(f"s_waitcnt vmcnt({3-i})")
        F = vFF + 4*i
        sel = f"op_sel:[0,{i&1}{',0' if i else ''}] op_sel_hi:[1,{i&1}{',1' if i else ''}]"
        for e in range(4):
            if i == 0 and e == 0:
                a(f"v_xor_b32 {v(vZ)}, {s(sEc)}, {v(F)}")
            else:
                a(f"v_bitop3_b32 {v(vZ)}, {v(vZ)}, {v(F+e)}, {s(sEc+e)} bitop3:0xf6")
            if e & 1:
                if i == 0: a(f"v_pk_mul_f32 {vp(vO2+e-1)}, {vp(F+e-1)}, {vp(vWc)} {sel}")
                else: a(f"v_pk_fma_f32 {vp(vO2+e-1)}, {vp(F+e-1)}, {vp(vWc+(i&~1))}, {vp(vO2+e-1)} {sel}")
    a(f"v_and_b32 {v(vZ)}, 0xff, {v(vZ)}")
    a(f"v_cmp_ne_u32 vcc, 0, {v(vZ)}")
    a("s_cbranch_vccz L_cok")
    a("s_mov_b64 exec, vcc")
    if psleep: a(f"s_sleep {psleep}")
    a(f"s_add_u32 {s(sLs)}, {s(sLs)}, 1")
    a(f"s_cmp_lt_u32 {s(sLs)}, 400000")
    a("s_cbranch_scc1 L_try")
    a("; sum over the 8 lane groups, then over the 4 waves (the last one to arrive writes the output)"); a.label("L_cok")
    a("s_mov_b64 exec, -1")
    if stamp in (2, 3): a("s_memrealtime s[64:65]")
    a(f"v_permlane32_swap_b32 {v(vO2)}, {v(vO2+2)}")
    a(f"v_permlane32_swap_b32 {v(vO2+1)}, {v(vO2+3)}")
    a(f"v_pk_add_f32 {vp(vO2)}, {vp(vO2)}, {vp(vO2+2)}")
    a(f"v_permlane16_swap_b32 {v(vO2)}, {v(vO2+1)}")
    a(f"v_add_f32 {v(vO2)}, {v(vO2)}, {v(vO2+1)}")
    a(f"ds_write_b32 {v(vTw)}, {v(vO2)}")
    a("s_mov_b64 exec, 1")
    a(f"ds_add_rtn_u32 {v(vX)}, {v(vFL)}, {v(vOne)} offset:{4*F_C}")
    a("s_mov_b64 exec, -1")
    assert (L_R - L_FL) % 256 == 0
    a(f"ds_read2st64_b32 {vp(vO2)}, {v(vFL)} offset0:{(L_R-L_FL)//256} offset1:{(L_R-L_FL)//256+1}")
    a(f"ds_read2st64_b32 {vp(vO2+2)}, {v(vFL)} offset0:{(L_R-L_FL)//256+2} offset1:{(L_R-L_FL)//256+3}")
    a("s_waitcnt lgkmcnt(0)")
    a(f"v_readfirstlane_b32 {s(sT0)}, {v(vX)}")
    a(f"v_pk_add_f32 {vp(vO2)}, {vp(vO2)}, {vp(vO2+2)}")
    a(f"v_add_f32 {v(vO2)}, {v(vO2)}, {v(vO2+1)}")
    a(f"s_cmp_lg_u32 {s(sT0)}, 3")
    a("s_cbranch_scc1 L_cend")
    a(f"v_add_f32_dpp {v(vO2)}, {v(vO2)}, {v(vO2)} row_ror:8 {DPPALL}")
    a("s_mov_b32 exec_lo, 0x00ff00ff")
    a("s_mov_b32 exec_hi, 0x00ff00ff")
    a(f"v_cvt_pk_bf16_f32 {v(vO2)}, {v(vO2)}, {v(vO2)}")
    a(f"buffer_store_short {v(vO2)}, {v(vKo)}, {srd(sOUT)}, {s(sCl+4)} offen {ofl}")
    if stamp in (1, 2, 3):
        a("s_mov_b64 exec, -1")
        a("s_memrealtime s[66:67]")
        a("s_waitcnt vmcnt(0)")
        a(f"s_memrealtime {sp(sSt+2)}")
        a("s_waitcnt lgkmcnt(0)")
        a(f"v_mov_b32 {v(vX)}, 0")
        if stamp == 2:
            for e, r in enumerate((64, 64, 66, 66, sSt+2, sSt+2)): a(f"v_mov_b32 {v(28+e)}, {s(r)}")
            a(f"s_mul_i32 {s(sT0)}, s2, 1280"); a(f"s_add_u32 {s(sT0)}, {s(sT0)}, {STAMP_OFF + 4096 + 1024 + 40}")
            a("s_mov_b64 exec, 1")
            a(f"buffer_store_dwordx4 {v4(28)}, {v(vX)}, {srd(sWS)}, {s(sT0)} offen")
            a(f"buffer_store_dwordx2 {vp(32)}, {v(vX)}, {srd(sWS)}, {s(sT0)} offen offset:16")
            a("s_mov_b64 exec, -1")
        if stamp == 3:
            for e, r in enumerate((60, 64, 64, 64, sSt+2, sLs)): a(f"v_mov_b32 {v(28+e)}, {s(r)}")
            a(f"s_lshl_b32 {s(sT0)}, s2, 5"); a(f"s_add_u32 {s(sT0)}, {s(sT0)}, {STAMP_OFF + 8}")
            a("s_mov_b64 exec, 1")
            a(f"buffer_store_dwordx4 {v4(28)}, {v(vX)}, {srd(sWS)}, {s(sT0)} offen")
            a(f"buffer_store_dwordx2 {vp(32)}, {v(vX)}, {srd(sWS)}, {s(sT0)} offen offset:16")
        else:
            for e in range(4): a(f"v_mov_b32 {v(24+e)}, {s(sSt+e)}")
            a(f"s_lshl_b32 {s(sT0)}, s2, 4")
            a(f"s_add_u32 {s(sT0)}, {s(sT0)}, {STAMP_OFF}")
            a("s_mov_b64 exec, 1")
            a(f"buffer_store_dwordx4 {v4(24)}, {v(vX)}, {srd(sWS)}, {s(sT0)} offen")
    a.label("L_cend")
    if stamp == 4:
        a("s_mov_b64 exec, -1")
        for e, r in enumerate([sSt] + CS): a(f"v_mov_b32 {v(24+e)}, {s(r)}")
        a(f"s_lshl2_add_u32 {s(sT0)}, s2, {s(sW)}")
        a(f"s_lshl_b32 {s(sT0)}, {s(sT0)}, 5")
        a(f"s_add_u32 {s(sT0)}, {s(sT0)}, {STAMP_OFF}")
        a(f"v_mov_b32 {v(vX)}, 0")
        a("s_mov_b64 exec, 1")
        a(f"buffer_store_dwordx4 {v4(24)}, {v(vX)}, {srd(sWS)}, {s(sT0)} offen")
        a(f"buffer_store_dwordx4 {v4(28)}, {v(vX)}, {srd(sWS)}, {s(sT0)} offen offset:16")
    a("s_waitcnt lgkmcnt(0)")
    a("s_endpgm")

    sE = 48
    sKS, sKZ, sVS, sVZ = 4, 8, 12, 16
    sTb, sA, sP, sPub, sRdA, sOwn, sM, sMv, sL, sSw, sSr, sR, sKp, sTm = 78, 79, 80, 81, 82, 83, 84, 85, 86, 87, 88, 89, 90, 96
    sPO, sSpin, sHc, sIx, sTg, sWa, sId, sEnd, sLo, sUp = 32, 33, 34, 38, 39, 40, 41, 42, 98, 99
    vL16, vFb, vFo, vMask, vU, vPa, vOi, vMl, vMr, vSo = 2, 3, 4, 5, 6, 9, 10, 11, 20, 22
    a("; ==== helper wave ===="); a.label("L_helper")
    a(f"s_memrealtime {sp(sTm)}")
    a(f"v_bfe_u32 {v(vSo)}, {v(vLane)}, 2, 3")
    a(f"v_lshl_add_u32 {v(vSo)}, {v(vSo)}, 11, {s(sRow0)}")
    a(f"v_and_b32 {v(vSo)}, 16383, {v(vSo)}")
    a(f"v_lshrrev_b32 {v(vY)}, 5, {v(vLane)}")
    a(f"v_lshl_add_u32 {v(vSo)}, {v(vY)}, 15, {v(vSo)}")
    a(f"v_and_b32 {v(vY)}, 3, {v(vLane)}")
    a(f"v_lshlrev_b32 {v(vY)}, 3, {v(vY)}")
    a(f"v_lshl_add_u32 {v(vSo)}, {v(vSo)}, 1, {v(vY)}")
    a(f"s_lshl_b32 {s(sR)}, {s(sGrp)}, 15")
    a(f"v_lshlrev_b32 {v(vL16)}, 4, {v(vLane)}")
    nb = 0 if "nosc" in dbg else SCB
    for b in (sKS, sKZ, sVS, sVZ): mkhi(b, nb)
    a("s_waitcnt lgkmcnt(0)")
    mklo(sKS, 52); mklo(sKZ, 54); mklo(sVS, 58); mklo(sVZ, 60)
    vG = 72
    def sc_loads(p):
        for n, b in enumerate((sKS, sKZ, sVS, sVZ)):
            a(f"buffer_load_dwordx2 {vp(vG+8*p+2*n)}, {v(vSo)}, {srd(b)}, {s(sR)} offen")
        a(f"s_add_u32 {s(sR)}, {s(sR)}, {4*32768}")
    sc_loads(0)
    a("s_barrier")
    def sc_pf():
        a(f"v_lshrrev_b32 {v(vX)}, 1, {v(vLane)}")
        a(f"v_lshlrev_b32 {v(vX)}, 10, {v(vX)}")
        a(f"v_and_b32 {v(vY)}, 1, {v(vLane)}")
        a(f"v_lshl_add_u32 {v(vX)}, {v(vY)}, 6, {v(vX)}")
        a(f"s_lshr_b32 {s(sT0)}, s2, 3")
        a(f"s_lshl_b32 {s(sT0)}, {s(sT0)}, 15")
        a(f"s_and_b32 {s(sT1)}, s2, 7")
        a(f"s_lshl_b32 {s(sT1)}, {s(sT1)}, 7")
        a(f"s_add_u32 {s(sT0)}, {s(sT0)}, {s(sT1)}")
        for b in (sKS, sKZ, sVS, sVZ):
            a(f"buffer_load_dword {v(vU)}, {v(vX)}, {srd(b)}, {s(sT0)} offen")
    if SPF == 1: sc_pf()
    mk(sWS, 74, WSB); mk(sDB, 72, 256)
    mk(sQ, 48, 12288); mk(sQC, 62, 384); mk(sQS, 64, 384)
    q_addr()
    a(f"s_mov_b32 {s(sTb)}, {s(sTm)}")
    a(f"s_mov_b32 {s(sT2)}, 0x05040100")
    a(f"s_mov_b32 {s(sT3)}, 0x07060302")
    a(f"v_lshlrev_b32 {v(vPa)}, 1, {v(vL16)}")
    a(f"v_add_u32 {v(vPa)}, {L_T}, {v(vPa)}")
    a(f"v_mov_b32 {v(vFb)}, {L_FL}")
    a(f"v_mov_b32 {v(vFo)}, 0")
    a(f"v_mov_b32 {v(vMask)}, 0xff")
    vE, vQd = 48, 136
    def claim():
        a(f"s_mul_i32 {s(sE+1)}, {s(sTb)}, 0x9e3779b1")
        a(f"s_lshr_b32 {s(sT1)}, {s(sE+1)}, 15")
        a(f"s_xor_b32 {s(sE+1)}, {s(sE+1)}, {s(sT1)}")
        a(f"s_mul_i32 {s(sE+1)}, {s(sE+1)}, 0x85ebca6b")
        a(f"s_lshr_b32 {s(sT1)}, {s(sE+1)}, 13")
        a(f"s_xor_b32 {s(sE+1)}, {s(sE+1)}, {s(sT1)}")
        a(f"s_max_u32 {s(sE+1)}, {s(sE+1)}, 1")
        a(f"v_mov_b32 v14, {s(sE+1)}")
        a("v_mov_b32 v15, 0")
        a("s_mov_b64 exec, 1")
        a(f"buffer_atomic_cmpswap v[14:15], {v(vFo)}, {srd(sDB)}, 0 offen sc0 sc1")
        a("s_waitcnt vmcnt(0)")
        a(f"v_readfirstlane_b32 {s(sE)}, v14")
        a("s_mov_b64 exec, -1")
        a(f"s_cmp_eq_u32 {s(sE)}, 0")
        a(f"s_cselect_b32 {s(sE)}, {s(sE+1)}, {s(sE)}")
    for p in range(8):
        g = vG + 8*p
        e = vE + 8*(p & 1)
        a(f"s_waitcnt vmcnt({4*(min(p+SLA-1, 7)-p) if p else 4*(SPF == 1)})")
        if p and p + SLA < 8: sc_loads(p + SLA)
        for h in range(2):
            a(f"v_perm_b32 {v(e+4*h+0)}, {v(g+2+h)}, {v(g+0+h)}, {s(sT2)}")
            a(f"v_perm_b32 {v(e+4*h+1)}, {v(g+6+h)}, {v(g+4+h)}, {s(sT2)}")
            a(f"v_perm_b32 {v(e+4*h+2)}, {v(g+2+h)}, {v(g+0+h)}, {s(sT3)}")
            a(f"v_perm_b32 {v(e+4*h+3)}, {v(g+6+h)}, {v(g+4+h)}, {s(sT3)}")
        a(f"v_mov_b32 {v(vY)}, {p+1}")
        a(f"ds_write_b128 {v(vPa)}, {v4(e)} offset:{2048*p}")
        a(f"ds_write_b128 {v(vPa)}, {v4(e+4)} offset:{2048*p+16}")
        a(f"ds_write_b32 {v(vFb)}, {v(vY)} offset:{4*F_T}")
        a("s_waitcnt lgkmcnt(3)")
        if p == 0:
            a(f"s_mov_b32 {s(sE)}, 0")
            a("s_cmp_lg_u32 s2, 0")
            a("s_cbranch_scc1 L_ne0")
            claim()
            a.label("L_ne0")
            if SPF == 2: sc_pf()
            if SWT:
                a.label("L_sw")
                a(f"s_sleep {hsleep}")
                a(f"ds_read_b32 {v(vY)}, {v(vFL)}")
                a("s_waitcnt lgkmcnt(0)")
                a(f"v_readlane_b32 {s(sT0)}, {v(vY)}, {F_RDY}")
                a(f"s_cmp_lt_i32 {s(sT0)}, {SWT}")
                a("s_cbranch_scc1 L_sw")
            qcs_loads()
            a(f"s_mul_i32 {s(sT0)}, {s(sGrp)}, 384")
            for n in range(4):
                a(f"s_add_u32 {s(sT0)}, {s(sT0)}, {(16 if n == 0 else 4)*384}")
                q_loads(sT0, vQd + 8*n)
            for n in range(1, SLA+1): sc_loads(n)
    if codepf & 1:
        a(f"s_getpc_b64 {sp(sT0)}")
        a.lines.append("L_pc:")
        a(f"s_sub_u32 {s(sT0)}, {s(sT0)}, L_pc-{KN}")
        a(f"s_subb_u32 {s(sT1)}, {s(sT1)}, 0")
        a(f"s_lshr_b32 {s(sT2)}, s2, 3")
        a(f"v_lshl_add_u32 {v(vY)}, {v(vLane)}, 5, {s(sT2)}")
        a(f"v_lshlrev_b32 {v(vY)}, 7, {v(vY)}")
        a(f"v_min_u32 {v(vY)}, L_end-{KN}, {v(vY)}")
        a("s_mov_b64 exec, 63")
        a(f"global_load_dword {v(vU)}, {v(vY)}, {sp(sT0)}")
        a("s_mov_b64 exec, -1")
    a(f"v_lshlrev_b32 {v(vX)}, 1, {v(vQo0)}")
    a(f"v_lshlrev_b32 {v(vY)}, 1, {v(vQo1)}")
    a(f"v_add_u32 {v(vX)}, {L_QO + 4*1536}, {v(vX)}")
    a(f"v_add_u32 {v(vY)}, {L_QO + 4*1536}, {v(vY)}")
    a(f"v_mov_b32 {v(vZ)}, {L_FL + 4*(F_Q+4)}")
    a(f"s_mov_b32 {s(sR)}, 0")
    a("s_waitcnt lgkmcnt(0)")
    qprep_cs()
    a.label("L_hq")
    for n in range(0, 8, 2): a(f"v_mov_b64 {vp(qr+n)}, {vp(vQd+n)}")
    for n in range(0, 24, 2): a(f"v_mov_b64 {vp(vQd+n)}, {vp(vQd+8+n)}")
    qprep_pair(vX, vY)
    a(f"ds_write_b32 {v(vZ)}, {v(vMask)}")
    a(f"s_add_u32 {s(sR)}, {s(sR)}, 1")
    a(f"v_add_u32 {v(vX)}, 1536, {v(vX)}")
    a(f"v_add_u32 {v(vY)}, 1536, {v(vY)}")
    a(f"v_add_u32 {v(vZ)}, 4, {v(vZ)}")
    a(f"s_cmp_lt_u32 {s(sR)}, 4")
    a("s_waitcnt lgkmcnt(0)")
    a("s_cbranch_scc1 L_hq")
    a(f"s_cmp_lg_u32 {s(sE)}, 0")
    a("s_cbranch_scc1 L_epd")
    a.label("L_epw")
    a(f"s_sleep {hsleep}")
    a(f"ds_read_b32 {v(vY)}, {v(vFL)}")
    a("s_waitcnt lgkmcnt(0)")
    a(f"v_readlane_b32 {s(sR)}, {v(vY)}, {F_RDY}")
    a(f"s_cmp_lt_i32 {s(sR)}, {EPAT}")
    a("s_cbranch_scc1 L_epw")
    a(f"s_buffer_load_dword {s(sE)}, {srd(sDB)}, 0")
    a("s_waitcnt lgkmcnt(0)")
    a(f"s_cmp_lg_u32 {s(sE)}, 0")
    a("s_cbranch_scc1 L_epd")
    claim()
    a.label("L_epd")
    a("s_waitcnt vmcnt(0)")
    a(f"s_lshr_b32 {s(sE+1)}, {s(sE)}, 8")
    a(f"s_lshr_b32 {s(sE+2)}, {s(sE)}, 16")
    a(f"s_lshr_b32 {s(sE+3)}, {s(sE)}, 24")
    for r in (sA, sP, sMv, sM, sOwn, sLo, sUp, sSpin): a(f"s_mov_b32 {s(r)}, 0")
    a(f"s_movk_i32 {s(sPub)}, {OFS + 24*C0 if ctl else 30000}"); a(f"s_mov_b32 {s(sRdA)}, 0x7fffffff")
    a(f"s_mov_b32 {s(sL)}, {F_K}")
    a(f"s_lshr_b32 {s(sT0)}, s2, 4"); a(f"s_and_b32 {s(sT1)}, s2, 15")
    a(f"s_cmp_eq_u32 {s(sT0)}, {s(sT1)}"); a(f"s_cselect_b32 {s(sIx)}, {s(sT0)}, 255")
    a(f"s_mul_i32 {s(sSw)}, {s(sIx)}, {STR}"); a(f"s_add_u32 {s(sSw)}, {s(sSw)}, {CT_OFF}")
    a(f"s_mov_b32 {s(sSr)}, {CT_OFF}")
    a(f"v_lshrrev_b32 {v(vX)}, 5, {v(vLane)}")
    a(f"v_lshlrev_b32 {v(vMl)}, 4, {v(vX)}")
    a(f"v_add_u32 {v(vMl)}, {L_FL + 4*F_ML}, {v(vMl)}")
    a(f"v_add_u32 {v(vOi)}, {L_QO}, {v(vL16)}")
    a(f"v_mov_b32 {v(vMr)}, {L_FL + 4*F_ML}")
    a(f"s_mov_b32 {s(sTg)}, 8")
    a(f"s_and_b32 {s(sId)}, s2, 0x70")
    a(f"s_and_b32 {s(sT0)}, s2, 7")
    a(f"s_lshl1_add_u32 {s(sId)}, {s(sT0)}, {s(sId)}")
    a(f"s_lshr_b32 {s(sT0)}, s2, 7")
    a(f"s_add_u32 {s(sId)}, {s(sId)}, {s(sT0)}")
    a(f"s_lshl_b32 {s(sT0)}, {s(sGrp)}, 7")
    a(f"s_add_u32 {s(sId)}, {s(sId)}, {s(sT0)}")
    a(f"s_mul_i32 {s(sHc)}, s2, 43691")
    a(f"s_lshr_b32 {s(sHc)}, {s(sHc)}, 18")
    a(f"s_lshr_b32 {s(sWa)}, s2, 3")
    a(f"s_and_b32 {s(sWa)}, {s(sWa)}, {MLST}")
    a(f"s_mul_i32 {s(sWa)}, {s(sWa)}, 24")
    a(f"s_addk_i32 {s(sWa)}, {OFS + 24*MLAT}")
    a("s_cmp_lt_u32 s2, 192")
    a(f"s_cselect_b32 {s(sWa)}, {s(sWa)}, 0x7fffffff")
    SH = 20
    def steer():
        a(f"s_mul_i32 {s(sT0)}, {s(sP)}, {s(sR)}")
        a(f"s_add_u32 {s(sT0)}, {s(sT0)}, {s(sA)}")
        a(f"s_sub_u32 {s(sT0)}, {s(sTm)}, {s(sT0)}")
        a(f"s_max_i32 {s(sT0)}, {s(sT0)}, {s(sLo)}")
        a(f"s_min_i32 {s(sT0)}, {s(sT0)}, {s(sUp)}")
        a(f"s_mul_i32 {s(sT0)}, {s(sT0)}, {G}")
        a(f"s_add_u32 {s(sT0)}, {s(sT0)}, {int((Dc + Df + 0.5) * (1 << SH))}")
        a(f"s_ashr_i32 {s(sT0)}, {s(sT0)}, {SH}")
        a(f"s_max_i32 {s(sT0)}, {s(sT0)}, {Dmin}")
        a(f"s_min_i32 {s(sT0)}, {s(sT0)}, {Dmax}")
        a(f"v_mov_b32 {v(vX)}, {s(sT0)}")
        a(f"ds_write_b32 {v(vFb)}, {v(vX)} offset:{4*F_D}")
    a("; pace control, softmax weights of finished head pairs, sums of finished heads"); a.label("L_hl")
    a(f"s_sleep {hsleep}")
    a(f"ds_read_b32 {v(vY)}, {v(vFL)}")
    a(f"s_memrealtime {sp(sTm)}")
    a("s_waitcnt lgkmcnt(0)")
    a(f"v_readlane_b32 {s(sR)}, {v(vY)}, {F_RDY}")
    a(f"v_readlane_b32 {s(sKp)}, {v(vY)}, {s(sL)}")
    a(f"s_sub_u32 {s(sTm)}, {s(sTm)}, {s(sTb)}")
    a(f"s_lshl_b32 {s(sTm)}, {s(sTm)}, 8")
    steer()
    a(f"s_cmp_ge_i32 {s(sR)}, {s(sRdA)}")
    a("s_cbranch_scc1 L_rd")
    a(f"s_cmp_ge_i32 {s(sR)}, {s(sPub)}")
    a("s_cbranch_scc1 L_pub")
    a(f"s_cmp_eq_u32 {s(sKp)}, {s(sTg)}")
    a("s_cbranch_scc1 L_prep")
    a(f"s_cmp_ge_i32 {s(sR)}, {s(sWa)}")
    a("s_cbranch_scc1 L_wts")
    a(f"s_cmp_eq_u32 {s(sL)}, {F_Z}")
    a("s_cbranch_scc0 L_hl")
    a("s_branch L_late")
    a.label("L_pub")
    a(f"s_cmp_eq_u32 {s(sP)}, 0")
    a(f"s_cselect_b32 {s(sT0)}, {P0}, {s(sP)}")
    a(f"s_sub_u32 {s(sT1)}, {s(sR)}, {s(sPub)}")
    a(f"s_mul_i32 {s(sT0)}, {s(sT0)}, {s(sT1)}")
    a(f"s_sub_u32 {s(sOwn)}, {s(sTm)}, {s(sT0)}")
    a(f"s_add_u32 {s(sRdA)}, {s(sPub)}, {24*DLY}")
    a(f"s_addk_i32 {s(sPub)}, {24*CP}")
    a(f"s_cmp_ge_u32 {s(sIx)}, {NS}")
    a("s_cbranch_scc1 L_hl")
    a(f"s_lshl_b32 {s(sT0)}, {s(sTb)}, 8")
    a(f"s_add_u32 {s(sT0)}, {s(sT0)}, {s(sOwn)}")
    a(f"v_mov_b32 v14, {s(sT0)}")
    a(f"v_mov_b32 v15, {s(sE)}")
    a("s_mov_b64 exec, 1")
    a(f"buffer_store_dwordx2 v[14:15], {v(vFo)}, {srd(sWS)}, {s(sSw)} offen sc0 sc1")
    a("s_mov_b64 exec, -1")
    a(f"s_add_u32 {s(sSw)}, {s(sSw)}, {NS*STR}")
    a("s_branch L_hl")
    def xrow16(op, x, t1):
        a(f"v_mov_b32 {v(t1)}, {v(x)}")
        a(f"v_permlane16_swap_b32 {v(x)}, {v(t1)}")
        a(f"{op} {v(x)}, {v(x)}, {v(t1)}")
    def xrows(op, x, t1):
        a(f"v_mov_b32 {v(t1)}, {v(x)}")
        a(f"v_permlane32_swap_b32 {v(x)}, {v(t1)}")
        a(f"{op} {v(x)}, {v(x)}, {v(t1)}")
        xrow16(op, x, t1)
    def red16(op, regs):
        for m in ("quad_perm:[1,0,3,2]", "quad_perm:[2,3,0,1]", "row_half_mirror", "row_mirror"):
            for r in regs: a(f"{op}_dpp {v(r)}, {v(r)}, {v(r)} {m} {DPPALL}")
    assert DLY <= CP
    a.label("L_rd")
    a(f"s_lshl_b32 {s(sT0)}, {s(sTb)}, 8")
    a(f"s_add_u32 {s(sT0)}, {s(sT0)}, {s(sOwn)}")
    a(f"s_mov_b32 {s(sT1)}, 0")
    a(f"s_mov_b32 {s(sT2)}, 0")
    for b in range(NS // 8):
        for n in range(8):
            a(f"s_buffer_load_dwordx2 {sp(4+2*n)}, {srd(sWS)}, {s(sSr)}")
            a(f"s_add_u32 {s(sSr)}, {s(sSr)}, {STR}")
        a("s_waitcnt lgkmcnt(0)")
        for n in range(8):
            a(f"s_sub_u32 {s(4+2*n)}, {s(4+2*n)}, {s(sT0)}")
            a(f"s_cmp_eq_u32 {s(5+2*n)}, {s(sE)}")
            a(f"s_cselect_b32 {s(4+2*n)}, {s(4+2*n)}, 0")
            a(f"s_addc_u32 {s(sT1)}, {s(sT1)}, 0")
            a(f"s_add_u32 {s(sT2)}, {s(sT2)}, {s(4+2*n)}")
    a(f"v_cvt_f32_u32 v15, {s(sT1)}")
    a(f"v_cvt_f32_i32 v14, {s(sT2)}")
    a("v_rcp_f32 v15, v15")
    a("v_mul_f32 v14, v14, v15")
    a("v_cvt_i32_f32 v14, v14")
    a(f"s_sub_u32 {s(sT2)}, {s(sRdA)}, {24*DLY}")
    a(f"s_mov_b32 {s(sRdA)}, 0x7fffffff")
    a(f"v_readfirstlane_b32 {s(sT0)}, v14")
    a(f"s_mov_b32 {s(sT3)}, {s(sMv)}")
    a(f"s_min_u32 {s(sMv)}, {s(sT1)}, 1")
    a(f"s_cmp_eq_u32 {s(sT1)}, 0")
    a("s_cbranch_scc1 L_hl")
    a(f"s_sub_u32 {s(sLo)}, 0, {s(sT0)}")
    a(f"s_max_i32 {s(sUp)}, {s(sLo)}, 0")
    a(f"s_min_i32 {s(sLo)}, {s(sLo)}, 0")
    a(f"s_add_u32 {s(sUp)}, {s(sUp)}, {CLIP*256}")
    a(f"s_sub_u32 {s(sLo)}, {s(sLo)}, {CLIP*256}")
    a(f"s_min_i32 {s(sUp)}, {s(sUp)}, {1 << 20}")
    a(f"s_max_i32 {s(sLo)}, {s(sLo)}, {-(1 << 20)}")
    a(f"s_add_u32 {s(sT0)}, {s(sT0)}, {s(sOwn)}")
    a(f"s_sub_u32 {s(sT1)}, {s(sT0)}, {s(sM)}")
    a(f"s_mov_b32 {s(sM)}, {s(sT0)}")
    a(f"s_mul_hi_u32 {s(sT1)}, {s(sT1)}, {round(2**32/(24*CP))}")
    a(f"s_cmp_eq_u32 {s(sT3)}, 0")
    a(f"s_cselect_b32 {s(sP)}, {P0}, {s(sT1)}")
    a(f"s_max_u32 {s(sP)}, {s(sP)}, 1")
    a(f"s_mul_i32 {s(sT1)}, {s(sP)}, {s(sT2)}")
    a(f"s_sub_u32 {s(sA)}, {s(sT0)}, {s(sT1)}")
    a("s_branch L_hl")
    a.label("L_prep")
    a(f"s_cmp_ge_u32 {s(sL)}, {F_V}")
    a("s_cbranch_scc1 L_mrg")
    g = 24
    a(f"ds_read_b128 {v4(g)}, {v(vPa)}")
    a(f"ds_read_b128 {v4(g+4)}, {v(vPa)} offset:16")
    a(f"s_add_u32 {s(sL)}, {s(sL)}, 1")
    a(f"s_sub_u32 {s(sT0)}, {s(sL)}, {F_K}")
    a(f"s_lshl_b32 {s(sT0)}, {s(sT0)}, 1")
    a(f"v_mov_b32 {v(vZ)}, {s(sT0)}")
    a("s_waitcnt lgkmcnt(0)")
    vMx, vZs, vLs = 40, 41, 42
    a(f"v_max_f32 {v(vMx)}, {v(g)}, {v(g+2)}")
    a(f"v_max3_f32 {v(vMx)}, {v(vMx)}, {v(g+4)}, {v(g+6)}")
    for e in range(4): a(f"v_lshlrev_b32 {v(g+8+e)}, 16, {v(g+2*e+1)}")
    red16("v_max_f32", [vMx])
    for e in range(4): a(f"v_and_b32 {v(g+12+e)}, 0xffff0000, {v(g+2*e+1)}")
    xrow16("v_max_f32", vMx, vU)
    for e in range(4): a(f"v_sub_f32 {v(g+2*e)}, {v(g+2*e)}, {v(vMx)}")
    for e in range(4): a(f"v_exp_f32 {v(g+2*e)}, {v(g+2*e)}")
    a(f"v_add_f32 {v(vLs)}, {v(g)}, {v(g+2)}")
    a(f"v_add_f32 {v(vU)}, {v(g+4)}, {v(g+6)}")
    a(f"v_add_f32 {v(vLs)}, {v(vLs)}, {v(vU)}")
    for e in range(4): a(f"v_mul_f32 {v(g+2*e)}, {v(g+2*e)}, {v(g+8+e)}")
    a(f"ds_write_b128 {v(vPa)}, {v4(g)}")
    a(f"ds_write_b128 {v(vPa)}, {v4(g+4)} offset:16")
    a(f"v_mul_f32 {v(vZs)}, {v(g)}, {v(g+12)}")
    for e in range(1, 4): a(f"v_fmac_f32 {v(vZs)}, {v(g+2*e)}, {v(g+12+e)}")
    red16("v_add_f32", [vLs, vZs])
    xrow16("v_add_f32", vLs, vU)
    xrow16("v_add_f32", vZs, vU)
    a(f"v_sub_f32 {v(vZs)}, 0, {v(vZs)}")
    a(f"v_mov_b32 {v(vMx+3)}, {v(vZs)}")
    a(f"ds_write_b128 {v(vMl)}, {v4(vMx)}")
    a(f"ds_write_b32 {v(vFb)}, {v(vZ)} offset:{4*F_P}")
    a(f"v_add_u32 {v(vPa)}, 2048, {v(vPa)}")
    a(f"v_add_u32 {v(vMl)}, 32, {v(vMl)}")
    a(f"s_cmp_eq_u32 {s(sL)}, {F_V}")
    a("s_waitcnt lgkmcnt(0)")
    a("s_cbranch_scc0 L_hl")
    a(f"v_add_u32 {v(vPa)}, {L_T}, {v(vL16)}")
    a(f"s_mov_b32 {s(sTg)}, 4")
    a(f"v_add_u32 {v(vX)}, {L_FL + 4*F_ML}, {v(vL16)}")
    a("s_mov_b64 exec, 0xffff")
    a(f"ds_read_b128 {v4(g)}, {v(vX)}")
    a(f"s_lshl_b32 {s(sT0)}, {s(sId)}, 8")
    a(f"s_add_u32 {s(sT0)}, {s(sT0)}, {ML_OFF}")
    a("s_waitcnt lgkmcnt(0)")
    a(f"v_mov_b32 {v(g+1)}, {s(sE)}")
    a(f"v_mov_b32 {v(g+3)}, {s(sE)}")
    a(f"buffer_store_dwordx4 {v4(g)}, {v(vL16)}, {srd(sWS)}, {s(sT0)} offen sc0 sc1")
    a("s_mov_b64 exec, -1")
    a("s_waitcnt vmcnt(0)")
    a("s_branch L_hl")
    a.label("L_wts")
    a(f"s_and_b32 {s(sT0)}, {s(sHc)}, 1")
    a(f"s_lshl_b32 {s(sT0)}, {s(sT0)}, 15")
    a(f"s_lshr_b32 {s(sT1)}, {s(sHc)}, 1")
    a(f"s_lshl4_add_u32 {s(sT0)}, {s(sT1)}, {s(sT0)}")
    a(f"s_add_u32 {s(sT0)}, {s(sT0)}, {ML_OFF}")
    a(f"s_add_u32 {s(sT1)}, {s(sT0)}, 16384")
    a(f"v_lshlrev_b32 {v(vX)}, 8, {v(vLane)}")
    a(f"s_cmp_eq_u32 {s(sSpin)}, 0")
    a("s_cbranch_scc0 L_wt1")
    a(f"buffer_load_dwordx4 {v4(g)}, {v(vX)}, {srd(sWS)}, {s(sT0)} offen")
    a(f"buffer_load_dwordx4 {v4(g+4)}, {v(vX)}, {srd(sWS)}, {s(sT1)} offen")
    a("s_branch L_wt2")
    a.label("L_wt1")
    a(f"buffer_load_dwordx4 {v4(g)}, {v(vX)}, {srd(sWS)}, {s(sT0)} offen sc0 sc1")
    a(f"buffer_load_dwordx4 {v4(g+4)}, {v(vX)}, {srd(sWS)}, {s(sT1)} offen sc0 sc1")
    a.label("L_wt2")
    a(f"s_add_u32 {s(sSpin)}, {s(sSpin)}, 1")
    a(f"s_add_u32 {s(sWa)}, {s(sR)}, 24")
    a(f"s_min_i32 {s(sWa)}, {s(sWa)}, {TOT - 24*9}")
    a(f"v_and_b32 {v(vX)}, 7, {v(vLane)}")
    a(f"v_lshlrev_b32 {v(vX)}, 6, {v(vX)}")
    a(f"v_lshrrev_b32 {v(vY)}, 3, {v(vLane)}")
    a(f"v_lshl_add_u32 {v(vX)}, {v(vY)}, 2, {v(vX)}")
    a("s_waitcnt vmcnt(0)")
    a(f"v_xor_b32 {v(vZ)}, {s(sE)}, {v(g+1)}")
    for r in (g+3, g+5, g+7): a(f"v_bitop3_b32 {v(vZ)}, {v(vZ)}, {v(r)}, {s(sE)} bitop3:0xf6")
    a(f"v_cmp_ne_u32 vcc, 0, {v(vZ)}")
    a(f"s_cmp_gt_u32 {s(sSpin)}, 200000")
    a("s_cbranch_scc1 L_wt3")
    a("s_cbranch_vccnz L_hl")
    a.label("L_wt3")
    a(f"s_mov_b32 {s(sWa)}, 0x7fffffff")
    a(f"v_max_f32 {v(vZ)}, {v(g)}, {v(g+4)}")
    red16("v_max_f32", [vZ])
    xrows("v_max_f32", vZ, vU)
    a(f"v_sub_f32 {v(g)}, {v(g)}, {v(vZ)}")
    a(f"v_sub_f32 {v(g+4)}, {v(g+4)}, {v(vZ)}")
    a(f"v_exp_f32 {v(g)}, {v(g)}")
    a(f"v_exp_f32 {v(g+4)}, {v(g+4)}")
    a(f"v_mul_f32 {v(vZ)}, {v(g)}, {v(g+2)}")
    a(f"v_fmac_f32 {v(vZ)}, {v(g+4)}, {v(g+6)}")
    red16("v_add_f32", [vZ])
    xrows("v_add_f32", vZ, vU)
    a(f"v_rcp_f32 {v(vZ)}, {v(vZ)}")
    a(f"v_mul_f32 {v(g)}, {v(g)}, {v(vZ)}")
    a(f"v_mul_f32 {v(g+4)}, {v(g+4)}, {v(vZ)}")
    a(f"v_add_u32 {v(vX)}, {L_W}, {v(vX)}")
    a(f"ds_write2_b32 {v(vX)}, {v(g)}, {v(g+4)} offset0:0 offset1:8")
    a(f"v_mov_b32 {v(vY)}, {s(sE)}")
    a(f"ds_write_b32 {v(vFb)}, {v(vY)} offset:{4*F_E}")
    a("s_waitcnt lgkmcnt(0)")
    a("s_branch L_hl")
    vDp, vMz, vO = 88, 104, 84
    def mread():
        for w_ in range(4):
            a(f"ds_read_b128 {v4(vDp+4*w_)}, {v(vOi)} offset:{768*w_}")
    def mzread():
        a(f"ds_read_b32 {v(vMz)}, {v(vMr)} offset:4")
    def msum():
        d = vDp
        for e in (0, 2): a(f"v_pk_add_f32 {vp(d+e)}, {vp(d+e)}, {vp(vMz)} op_sel:[0,0] op_sel_hi:[1,0]")
        for e in (0, 2): a(f"v_pk_add_f32 {vp(d+4+e)}, {vp(d+4+e)}, {vp(d+8+e)}")
        for e in (0, 2): a(f"v_pk_add_f32 {vp(d+e)}, {vp(d+e)}, {vp(d+12+e)}")
        for e in (0, 2): a(f"v_pk_add_f32 {vp(d+e)}, {vp(d+e)}, {vp(d+4+e)}")
        for e in range(4): a(f"v_bfi_b32 {v(vO+e)}, {v(vMask)}, {s(sE+e)}, {v(d+e)}")
    a.label("L_mrg")
    mzread(); mread()
    a(f"s_add_u32 {s(sL)}, {s(sL)}, 1")
    a(f"s_sub_u32 {s(sT0)}, {s(sL)}, {F_V}")
    a(f"v_mov_b32 {v(vZ)}, {s(sT0)}")
    a(f"ds_write_b32 {v(vFb)}, {v(vZ)} offset:{4*F_M}")
    a(f"s_and_b32 {s(sT0)}, {s(sT0)}, 3")
    a(f"s_cselect_b32 {s(sT0)}, 1, -3")
    a(f"s_mul_i32 {s(sT0)}, {s(sT0)}, 3072")
    a(f"v_add_u32 {v(vOi)}, {s(sT0)}, {v(vOi)}")
    a(f"v_add_u32 {v(vMr)}, 16, {v(vMr)}")
    a(f"s_cmp_eq_u32 {s(sL)}, {F_V+15}")
    a(f"s_cselect_b32 {s(sL)}, {F_Z}, {s(sL)}")
    a("s_waitcnt lgkmcnt(0)")
    msum()
    a(f"ds_write_b128 {v(vPa)}, {v4(vO)}")
    a(f"v_add_u32 {v(vPa)}, 1024, {v(vPa)}")
    a("s_waitcnt lgkmcnt(0)")
    a("s_branch L_hl")
    a.label("L_late")
    if codepf & 2:
        a(f"s_getpc_b64 {sp(sT0)}")
        a(f"v_lshlrev_b32 {v(vY)}, 7, {v(vLane)}")
        a(f"v_min_u32 {v(vY)}, L_end-L_late-4, {v(vY)}")
        a("s_mov_b64 exec, 0xff")
        a(f"global_load_dword {v(vU)}, {v(vY)}, {sp(sT0)}")
        if codepf & 16:
            a(f"s_sub_u32 {s(sT0)}, {s(sT0)}, L_late+4-L_tail")
            a(f"s_subb_u32 {s(sT1)}, {s(sT1)}, 0")
            a(f"global_load_dword {v(vU)}, {v(vY)}, {sp(sT0)}")
            a(f"s_add_u32 {s(sT0)}, {s(sT0)}, L_gw-L_tail")
            a(f"s_addc_u32 {s(sT1)}, {s(sT1)}, 0")
            a(f"global_load_dword {v(vU)}, {v(vY)}, {sp(sT0)}")
        a("s_mov_b64 exec, -1")
    PSTEP = 2 * NPART * PW
    a(f"s_mul_i32 {s(sPO)}, {s(sId)}, {PW}")
    a(f"s_add_u32 {s(sTg)}, {s(sPO)}, {15*PSTEP}")
    a(f"s_mul_i32 {s(sEnd)}, {s(sP)}, {TOT - FLG}")
    a(f"s_add_u32 {s(sEnd)}, {s(sEnd)}, {s(sA)}")
    a(f"s_cmp_eq_u32 {s(sP)}, 0")
    a(f"s_cselect_b32 {s(sEnd)}, -2, {s(sEnd)}")
    a(f"s_min_u32 {s(sEnd)}, {s(sEnd)}, -2")
    vPt = 24
    a(f"v_add_u32 {v(vPa)}, {L_T}, {v(vL16)}")
    for n in range(15):
        a(f"ds_read_b128 {v4(vPt+4*n)}, {v(vPa)} offset:{1024*n}")
        if n == 9: a("s_waitcnt lgkmcnt(0)")
    mzread()
    a("s_mov_b32 exec_hi, 0xffff")
    def flush():
        for p_ in range(15):
            a(f"buffer_store_dwordx4 {v4(vPt+4*p_)}, {v(vL16)}, {srd(sWS)}, {s(sPO)} offen {stf}")
            if p_ < 14: a(f"s_add_u32 {s(sPO)}, {s(sPO)}, {PSTEP}")
        a(f"s_mov_b32 {s(sEnd)}, -1")
    a("; wait for the last sums; a workgroup that is behind stores its earlier partials meanwhile"); a.label("L_w7")
    a(f"ds_read_b32 {v(vY)}, {v(vFL)}")
    mread()
    a(f"s_memrealtime {sp(sTm)}")
    a("s_waitcnt lgkmcnt(0)")
    a(f"v_readlane_b32 {s(sT0)}, {v(vY)}, {F_V+15}")
    a(f"v_readlane_b32 {s(sR)}, {v(vY)}, {F_RDY}")
    a(f"s_cmp_eq_u32 {s(sT0)}, 4")
    a("s_cbranch_scc1 L_g7")
    a(f"s_sub_u32 {s(sTm)}, {s(sTm)}, {s(sTb)}")
    a(f"s_lshl_b32 {s(sTm)}, {s(sTm)}, 8")
    a(f"s_cmp_ge_i32 {s(sR)}, {TOT - 36}")
    a("s_cbranch_scc1 L_ns7")
    steer()
    a.label("L_ns7")
    a(f"s_cmp_lt_u32 {s(sTm)}, {s(sEnd)}")
    a("s_cbranch_scc1 L_w7")
    flush()
    a("s_branch L_w7")
    a.label("L_g7")
    if stamp in (2, 3): a("s_memrealtime s[62:63]")
    msum()
    a(f"buffer_store_dwordx4 {v4(vO)}, {v(vL16)}, {srd(sWS)}, {s(sTg)} offen {stf}")
    a(f"s_cmp_eq_u32 {s(sEnd)}, -1")
    a("s_cbranch_scc1 L_hend")
    flush()
    a.label("L_hend")
    for n in range(min(GM, 16), 17):
        a(f"v_mov_b32 {v(vX)}, {n}")
        a(f"s_waitcnt vmcnt({16-n})")
        a(f"ds_write_b32 {v(vFb)}, {v(vX)} offset:{4*F_G}")
    a("s_waitcnt lgkmcnt(0)")
    if stamp in (1, 2, 3):
        a("s_mov_b64 exec, -1")
        a(f"s_memrealtime {sp(sSt+2)}")
        a("s_waitcnt lgkmcnt(0)")
        if stamp == 2:
            for e, r in enumerate((62, 62) + (sSt+2,)*6): a(f"v_mov_b32 {v(28+e)}, {s(r)}")
            a(f"s_mul_i32 {s(sT0)}, s2, 1280"); a(f"s_add_u32 {s(sT0)}, {s(sT0)}, {STAMP_OFF + 4096 + 1024 + 32}")
            a("s_mov_b64 exec, 1")
            a(f"buffer_store_dwordx2 {vp(28)}, {v(vFo)}, {srd(sWS)}, {s(sT0)} offen")
        if stamp == 3:
            for e, r in enumerate((sSt, 62) + (sSt+2,)*5 + (sT3,)): a(f"v_mov_b32 {v(28+e)}, {s(r)}")
            a(f"s_lshl_b32 {s(sT0)}, s2, 5"); a(f"s_add_u32 {s(sT0)}, {s(sT0)}, {STAMP_OFF}")
            a("s_mov_b64 exec, 1")
            a(f"buffer_store_dwordx2 {vp(28)}, {v(vFo)}, {srd(sWS)}, {s(sT0)} offen")
        a("s_cmp_lt_u32 s2, 192")
        a("s_cbranch_scc1 L_end")
        if stamp in (2, 3):
            a(f"buffer_store_dwordx2 {vp(30)}, {v(vFo)}, {srd(sWS)}, {s(sT0)} offen offset:8")
            a(f"buffer_store_dwordx4 {v4(32)}, {v(vFo)}, {srd(sWS)}, {s(sT0)} offen offset:16")
        if stamp in (1, 2):
            a("s_mov_b64 exec, -1")
            for e in range(4): a(f"v_mov_b32 {v(24+e)}, {s(sSt+e)}")
            a(f"s_lshl_b32 {s(sT0)}, s2, 4")
            a(f"s_add_u32 {s(sT0)}, {s(sT0)}, {STAMP_OFF}")
            a("s_mov_b64 exec, 1")
            a(f"buffer_store_dwordx4 {v4(24)}, {v(vFo)}, {srd(sWS)}, {s(sT0)} offen")
    a.label("L_end")
    a("s_endpgm")
    a.raw('.section .rodata,"a"')
    a.raw(".p2align 6"); a.raw(f".amdhsa_kernel {KN}")
    a.raw(f"  .amdhsa_next_free_vgpr {NV}"); a.raw("  .amdhsa_next_free_sgpr 102"); a.raw(f"  .amdhsa_accum_offset {NV}")
    a.raw("  .amdhsa_group_segment_fixed_size 0"); a.raw("  .amdhsa_kernarg_size 112"); a.raw("  .amdhsa_user_sgpr_count 2")
    a.raw("  .amdhsa_user_sgpr_kernarg_segment_ptr 1"); a.raw("  .amdhsa_system_sgpr_workgroup_id_x 1"); a.raw(".end_amdhsa_kernel")
    t = a.text()
    if safe:
        out = []
        for l in t.split("\n"):
            out.append(l)
            if l == f"{KN}:": out.append("    s_mov_b32 s100, 0")
            if re.fullmatch(r"L_(B\d+_\dw|cr\d|kw|kr\d|vw|vr\d|epw|sw|hl|gw|w7):", l):
                out += ["    s_add_u32 s100, s100, 1", "    s_cmp_gt_u32 s100, 3000000", "    s_cbranch_scc1 L_end"]
        t = "\n".join(out)
    return t

if __name__ == "__main__":
    import argparse
    ap = argparse.ArgumentParser()
    ap.add_argument("-o", default="standalone__kv_cache_quant_pre_rope_vs_post_rope__decode.s")
    args = ap.parse_args()
    open(args.o, "w").write(gen())
```

```python
import re, sys, importlib
def mkprobe(s, KN, mode, K=10, base=0, j=20):
    m = re.search(r"; @launch (grid=\S+ block=\S+ lds=\d+)", s)
    s = s.replace(m.group(0), f"; @launch kernel={KN} {m.group(1)}\n; @launch kernel=probe_kernel grid=(1,1,1) block=(64,1,1) lds=0")
    val = {0: "s_sub_u32 s10, s6, s7", 1: "s_sub_u32 s10, s6, s12", 2: "s_mov_b32 s10, s7"}[mode]
    code = f'''.globl probe_kernel
.p2align 8
.type probe_kernel,@function
probe_kernel:
    s_cmp_ge_u32 s2, 1
    s_cbranch_scc1 L_pe
    s_memrealtime s[30:31]
    s_load_dwordx2 s[20:21], s[0:1], 104
    s_mov_b32 s22, 1610612736
    s_mov_b32 s23, 0x20000
    v_lshlrev_b32 v1, 4, v0
    v_mul_u32_u24 v2, 1280, v0
    s_mov_b32 s4, 0x40000000
    s_mov_b32 s14, {0x40000000 + 4096 + 4*(1+j)}
    s_add_u32 s15, s14, {64*1280}
    s_add_u32 s16, s15, {64*1280}
    s_add_u32 s17, s16, {64*1280}
    s_waitcnt lgkmcnt(0)
    buffer_load_dwordx4 v[4:7], v1, s[20:23], s4 offen
    buffer_load_dwordx4 v[8:11], v1, s[20:23], s4 offen offset:1024
    buffer_load_dwordx4 v[12:15], v1, s[20:23], s4 offen offset:2048
    buffer_load_dwordx4 v[16:19], v1, s[20:23], s4 offen offset:3072
    buffer_load_dword v20, v2, s[20:23], s14 offen
    buffer_load_dword v21, v2, s[20:23], s15 offen
    buffer_load_dword v22, v2, s[20:23], s16 offen
    buffer_load_dword v23, v2, s[20:23], s17 offen
    s_waitcnt vmcnt(0)
    v_sub_u32 v4, s30, v4
    v_sub_u32 v8, s30, v8
    v_sub_u32 v12, s30, v12
    v_sub_u32 v16, s30, v16
    v_sub_u32 v6, s30, v6
    v_sub_u32 v10, s30, v10
    v_sub_u32 v14, s30, v14
    v_sub_u32 v18, s30, v18
    v_sub_u32 v20, s30, v20
    v_sub_u32 v21, s30, v21
    v_sub_u32 v22, s30, v22
    v_sub_u32 v23, s30, v23
    v_max_u32 v4, v4, v8
    v_max_u32 v12, v12, v16
    v_max_u32 v4, v4, v12
    v_min_u32 v6, v6, v10
    v_min_u32 v14, v14, v18
    v_min_u32 v6, v6, v14
    v_add_u32 v20, v20, v21
    v_add_u32 v22, v22, v23
    v_add_u32 v20, v20, v22
    s_mov_b32 s5, 0
    s_mov_b32 s6, 0
    s_mov_b32 s7, -1
    s_mov_b32 s12, 0
L_pl:
    s_nop 4
    v_readlane_b32 s8, v4, s5
    v_readlane_b32 s9, v6, s5
    v_readlane_b32 s13, v20, s5
    s_nop 4
    s_max_u32 s6, s6, s8
    s_min_u32 s7, s7, s9
    s_add_u32 s12, s12, s13
    s_add_u32 s5, s5, 1
    s_cmp_lt_u32 s5, 64
    s_cbranch_scc1 L_pl
    s_lshr_b32 s12, s12, 8
    {val}
    s_sub_u32 s10, s10, {base}
    s_min_u32 s10, s10, 3000
    s_mul_i32 s10, s10, {K}
    s_add_u32 s10, s10, 500
L_ps:
    s_memrealtime s[32:33]
    s_waitcnt lgkmcnt(0)
    s_sub_u32 s11, s32, s30
    s_cmp_lt_u32 s11, s10
    s_cbranch_scc1 L_ps
L_pe:
    s_endpgm
'''
    s = s.replace('.section .rodata', code + '.section .rodata')
    s += '''.p2align 6
.amdhsa_kernel probe_kernel
  .amdhsa_next_free_vgpr 24
  .amdhsa_next_free_sgpr 40
  .amdhsa_accum_offset 24
  .amdhsa_group_segment_fixed_size 0
  .amdhsa_kernarg_size 112
  .amdhsa_user_sgpr_count 2
  .amdhsa_user_sgpr_kernarg_segment_ptr 1
  .amdhsa_system_sgpr_workgroup_id_x 1
.end_amdhsa_kernel
'''
    return s
if __name__ == "__main__":
    import gen_g as g
    B = 'bench/'
    s = g.gen(stamp=2)
    open(B+'p_z.s','w').write(mkprobe(s, g.KN, 0, K=0))
    open(B+'p_dur.s','w').write(mkprobe(s, g.KN, 0, base=10000))
    open(B+'p_t0.s','w').write(mkprobe(s, g.KN, 1, j=0))
    open(B+'p_t20.s','w').write(mkprobe(s, g.KN, 1, j=20, base=1500))
    open(B+'p_t122.s','w').write(mkprobe(s, g.KN, 1, j=122, base=9500))
    open(B+'p_gap.s','w').write(mkprobe(s, g.KN, 2))
```

```python
import sys, re, json
sys.path.insert(0, "gen"); sys.path.insert(0, "bench")
import gen_g as g
from build import build
s0 = g.gen()
def addk(s, ticks):
    m = re.search(r"; @launch (grid=\S+ block=\S+ lds=\d+)", s)
    a = f"; @launch kernel={g.KN} {m.group(1)}"; b = "; @launch kernel=nop_kernel grid=(1,1,1) block=(64,1,1) lds=0"
    s = s.replace(m.group(0), a + "\n" + b)
    body = "" if not ticks else f"    s_memrealtime s[4:5]\n    s_waitcnt lgkmcnt(0)\nL_sp:\n    s_memrealtime s[6:7]\n    s_waitcnt lgkmcnt(0)\n    s_sub_u32 s8, s6, s4\n    s_cmp_lt_u32 s8, {ticks}\n    s_cbranch_scc1 L_sp\n"
    s = s.replace('.section .rodata', ".globl nop_kernel\n.p2align 8\n.type nop_kernel,@function\nnop_kernel:\n" + body + "    s_endpgm\n" + '.section .rodata')
    s += '''.p2align 6
.amdhsa_kernel nop_kernel
  .amdhsa_next_free_vgpr 8
  .amdhsa_next_free_sgpr 16
  .amdhsa_accum_offset 8
  .amdhsa_group_segment_fixed_size 0
  .amdhsa_kernarg_size 112
  .amdhsa_user_sgpr_count 2
  .amdhsa_user_sgpr_kernarg_segment_ptr 1
  .amdhsa_system_sgpr_workgroup_id_x 1
.end_amdhsa_kernel
'''
    return s
specs = []
open("x_main.s","w").write(s0); specs.append(build("x_main.s"))
for t in (0, 100, 200, 300, 500, 1000):
    open(f"x_{t}.s","w").write(addk(s0, t)); sp = build(f"x_{t}.s"); specs.append(sp)
for t in (0, 500):
    specs.append(f"x_{t}.co,nop_kernel:1:64:0")
open("specsx.txt","w").write("\n".join(specs)+"\n")
print(json.dumps(["bench/bench","bench/run.sh","bench/specsx.txt"]+sorted(set("bench/"+s.split(",")[0] for s in specs))))
```
